```python
import torch

def _softmax(x, axis=-1):
    return torch.softmax(x, dim=axis)

def _gelu(x):
    return torch.nn.functional.gelu(x, approximate='tanh')

def _silu(x):
    return torch.nn.functional.silu(x)

def _sigmoid(x):
    return torch.sigmoid(x)

def _layernorm(x, axis=-1, eps=1e-05):
    m = x.mean(dim=axis, keepdim=True)
    v = x.var(dim=axis, keepdim=True, unbiased=False)
    return (x - m) / torch.sqrt(v + eps)

def _scatter_add(tgt, idx, src, axis=0):
    return tgt.clone().index_add_(axis, idx, src)

def _segment_sum(src, seg, n):
    out = torch.zeros((n,) + src.shape[1:], dtype=src.dtype)
    return out.index_add_(0, seg, src)

def _pad(x, pw):
    flat = tuple((v for pair in reversed(pw) for v in pair))
    return torch.nn.functional.pad(x, flat)
kernel_name = 'standalone__tree_speculative_verify_tree_attention_over_candidate_token_tree__sampling'

def setup_inputs():

    _w = lambda a: (lambda t: t.to(torch.bfloat16) if t.is_floating_point() else t)(torch.as_tensor(a))
    B, Hq, Hkv, T, C, D = (32, 32, 4, 32, 2048, 128)
    tree_mask = torch.zeros((B, T, T), dtype=float)
    for b in range(B):
        parent = torch.zeros(T, dtype=torch.int64)
        for i in range(1, T):
            parent[i] = int(torch.randint(0, i, (1,)).item())
        for i in range(T):
            j = i
            tree_mask[b, i, j] = 1.0
            while j > 0:
                j = parent[j]
                tree_mask[b, i, j] = 1.0
    return {'q': _w((lambda *s: torch.randn(*s, dtype=torch.bfloat16) * 0.8)(B, Hq, T, D)), 'k_cache': _w((lambda *s: torch.randn(*s, dtype=torch.bfloat16) * 0.8)(B, Hkv, C, D)), 'v_cache': _w((lambda *s: torch.randn(*s, dtype=torch.bfloat16) * 0.05)(B, Hkv, C, D)), 'k_tree': _w((lambda *s: torch.randn(*s, dtype=torch.bfloat16) * 0.8)(B, Hkv, T, D)), 'v_tree': _w((lambda *s: torch.randn(*s, dtype=torch.bfloat16) * 0.05)(B, Hkv, T, D)), 'tree_mask': _w(tree_mask)}

def reference(q, k_cache, v_cache, k_tree, v_tree, tree_mask):
    B, Hq, T, D = q.shape
    Hkv, C = (k_cache.shape[1], k_cache.shape[2])
    rep = Hq // Hkv
    kc = (lambda x, n, axis: torch.repeat_interleave(x, n, dim=axis))(k_cache, rep, axis=1)
    vc = (lambda x, n, axis: torch.repeat_interleave(x, n, dim=axis))(v_cache, rep, axis=1)
    kt = (lambda x, n, axis: torch.repeat_interleave(x, n, dim=axis))(k_tree, rep, axis=1)
    vt = (lambda x, n, axis: torch.repeat_interleave(x, n, dim=axis))(v_tree, rep, axis=1)
    k = torch.concatenate([kc, kt], axis=2)
    v = torch.concatenate([vc, vt], axis=2)
    scale = D ** (-0.5)
    scores = torch.einsum('bhqd,bhkd->bhqk', q, k) * scale
    ctx_mask = torch.ones((B, 1, T, C), dtype=scores.dtype)
    tm = tree_mask[:, None, :, :].clone()
    full_mask = torch.concatenate([ctx_mask, tm], axis=-1)
    scores = scores + (1.0 - full_mask) * -1000000000.0
    p = _softmax(scores, axis=-1)
    return torch.einsum('bhqk,bhkd->bhqd', p, v)
```

```python
import re

REG = re.compile(r"\b([vas])\[(\d+):(\d+)\]|\b([vas])(\d+)\b|\b(vcc|m0|exec)\b")

TRANS = ("v_exp_f32", "v_log_f32", "v_rcp_f32", "v_rsq_f32", "v_sqrt_f32", "v_sin_f32", "v_cos_f32")


def regs_of(tok):
    out = []
    for m in REG.finditer(tok):
        if m.group(1):
            out += [(m.group(1), i) for i in range(int(m.group(2)), int(m.group(3)) + 1)]
        elif m.group(4):
            out.append((m.group(4), int(m.group(5))))
        else:
            out.append((m.group(6), 0))
    return out


def split_ops(s):
    ops, cur, depth = [], "", 0
    for ch in s:
        if ch == "[":
            depth += 1
        if ch == "]":
            depth -= 1
        if ch == "," and depth == 0:
            ops.append(cur.strip())
            cur = ""
        else:
            cur += ch
    if cur.strip():
        ops.append(cur.strip())
    return ops


class I:
    def __init__(self, text):
        self.text = text
        t = text.split(";")[0].strip()
        parts = t.split(None, 1)
        self.op = parts[0]
        rest = parts[1] if len(parts) > 1 else ""
        ops = split_ops(rest)
        self.ops = ops
        op = self.op
        self.cls = "other"
        self.w, self.r = [], []
        self.srcc = []
        self.srcab = []
        self.states = 1
        if op == "s_nop":
            self.states = int(ops[0], 0) + 1
            self.cls = "nop"
        elif op.startswith("v_mfma"):
            self.cls = "mfma"
            self.w = regs_of(ops[0])
            self.srcab = regs_of(ops[1]) + regs_of(ops[2])
            self.srcc = regs_of(ops[3].split()[0])
            self.r = self.srcab + self.srcc
        elif op.startswith("v_cmp"):
            self.cls = "valu"
            self.w = regs_of(ops[0])
            self.r = sum((regs_of(o) for o in ops[1:]), [])
        elif op.startswith("v_permlane"):
            self.cls = "permlane"
            self.w = regs_of(ops[0]) + regs_of(ops[1])
            self.r = list(self.w)
        elif op.startswith("v_readfirstlane") or op.startswith("v_readlane"):
            self.cls = "readlane"
            self.w = regs_of(ops[0])
            self.r = sum((regs_of(o) for o in ops[1:]), [])
        elif op.startswith("v_"):
            self.cls = "valu"
            self.w = regs_of(ops[0])
            srcs = ops[1:]
            self.r = sum((regs_of(o.split(" op_sel")[0]) for o in srcs), [])
            if op.startswith("v_fmac") or op.startswith("v_pk_fmac"):
                self.r += self.w
            if op.startswith("v_cndmask") and len(ops) == 3:
                self.r.append(("vcc", 0))
        elif op.startswith("ds_read"):
            self.cls = "dsr"
            self.w = regs_of(ops[0])
            self.r = regs_of(ops[1].split()[0])
        elif op.startswith("ds_write"):
            self.cls = "dsw"
            self.r = sum((regs_of(o.split()[0]) for o in ops), [])
        elif op.startswith("buffer_load"):
            self.cls = "vmem"
            if " lds" in t:
                self.r = sum((regs_of(o.split()[0]) for o in ops), []) + [("m0", 0)]
                self.cls = "dma"
            else:
                self.w = regs_of(ops[0])
                self.r = sum((regs_of(o.split()[0]) for o in ops[1:]), [])
        elif op.startswith("buffer_store") or op.startswith("global_store"):
            self.cls = "store"
            self.r = sum((regs_of(o.split()[0]) for o in ops), [])
            self.data = regs_of(ops[0]) if op.startswith("buffer") else regs_of(ops[1])
        elif op.startswith("s_"):
            self.cls = "salu"
            if op.startswith(("s_cmp", "s_cbranch", "s_branch", "s_waitcnt", "s_barrier", "s_endpgm", "s_setprio", "s_sleep")):
                self.r = sum((regs_of(o) for o in ops), [])
            else:
                self.w = regs_of(ops[0]) if ops else []
                self.r = sum((regs_of(o) for o in ops[1:]), [])
        self.trans = op.startswith(TRANS)
        self.isvalu = self.cls in ("valu", "permlane", "readlane")


def check(lines, name=""):
    ins = [I(l) for l in lines if l.strip() and not l.strip().endswith(":") and not l.strip().startswith((";", "."))]
    errs = []
    n = len(ins)
    for j, c in enumerate(ins):
        dist = 0
        for i in range(j - 1, max(-1, j - 30), -1):
            p = ins[i]
            need = 0
            why = ""
            pw, cr, cw = set(p.w), set(c.r), set(c.w)
            if p.isvalu and c.cls == "mfma" and pw & cr:
                need, why = max(need, 2), "valu->mfma"
            if p.cls == "mfma":
                if c.cls == "mfma":
                    if pw & set(c.srcab):
                        need, why = max(need, 12), "mfma D->A/B"
                    if pw & set(c.srcc) and p.w != c.srcc:
                        need, why = max(need, 10), "mfma D->C partial"
                    if pw & cw and not (pw & set(c.srcc)):
                        need, why = max(need, 0), ""
                elif c.cls != "salu" and c.cls != "nop" and (pw & cr or pw & cw):
                    need, why = max(need, 12), "mfma D->valu/mem"
                if c.isvalu and set(p.srcc) & cw:
                    need, why = max(need, 7), "mfma C WAR"
            if p.trans and c.isvalu and not c.trans and pw & cr:
                need, why = max(need, 1), "trans->valu"
            if p.trans and c.cls == "mfma" and pw & cr:
                need, why = max(need, 2), "trans->mfma"
            if p.isvalu and c.cls == "permlane" and pw & cr:
                need, why = max(need, 2), "valu->permlane"
            if p.isvalu and c.cls == "readlane" and pw & cr:
                need, why = max(need, 1), "valu->readlane"
            sw = {x for x in pw if x[0] in ("s", "vcc")}
            if p.isvalu and sw:
                if c.isvalu and sw & cr:
                    need, why = max(need, 2), "valu sgpr->valu"
                if c.cls in ("vmem", "dma", "store") and sw & cr:
                    need, why = max(need, 5), "valu sgpr->vmem"
            if p.cls == "salu" and ("m0", 0) in pw and c.cls == "dma":
                need, why = max(need, 1), "m0->dma"
            if p.cls == "store" and ("x4" in p.op or "x3" in p.op) and set(p.data) & cw:
                need, why = max(need, 2 if c.isvalu else 1), "store data WAR"
            if dist < need:
                errs.append(f"{name}: [{why}] need {need} have {dist}: '{p.text.strip()}' -> '{c.text.strip()}'")
            dist += p.states
    return errs
```

```python
import math
import struct
import sys

from hazard import check

NAME = "standalone__tree_speculative_verify_tree_attention_over_candidate_token_tree__sampling"

HEADER = """; Kernarg layout for this problem (72 bytes, ptrs only, base s[0:1]):
"""


def f32hex(x):
    return "0x%08x" % struct.unpack("<I", struct.pack("<f", x))[0]


class Gen:
    def __init__(self, mode=1, nt=False, dma_gaps=None, exp_end=28, align_pad=0, swap_order=False,
                 kread_gaps=None, vread_gaps=None):
        self.mode = mode
        self.nt = nt
        self.exp_end = exp_end
        self.align_pad = align_pad
        self.swap_order = swap_order
        self.dma_gaps = dma_gaps or [8, 9, 10, 11, 12, 13, 14, 15]
        self.kread_gaps = kread_gaps
        self.vread_gaps = vread_gaps
        self.out = []
        self.vKrd = 2
        self.vVrd = 10
        self.vKdma = 14
        self.vVdma = 18
        self.vQoff = 19
        self.vL = 20
        self.vTS = 22
        self.vT = 24
        self.vS = 32
        self.vNM = 96
        self.vP = 128
        self.vO0 = 160
        self.vX = 224
        self.aO1 = 0
        self.aQ = 64
        self.aK = 128
        self.aV = 192
        self.sK, self.sV, self.sQ, self.sKT, self.sVT, self.sM, self.sO = 36, 40, 44, 48, 52, 56, 60
        self.sKoff, self.sVoff, self.sKdst, self.sVdst, self.sCnt, self.sThr, self.sC = 64, 65, 66, 67, 68, 69, 70
        self.sH0, self.sH1, self.sW = 71, 72, 3
        self.LDS_K, self.LDS_V, self.LDS_T = 0, 65536, 131072
        self.LDS_BYTES = 147456

    def e(self, s):
        self.out.append("    " + s)

    def lab(self, s):
        self.out.append(s + ":")

    def S(self, buf, blk, r=None):
        b = self.vS + 32 * buf + 16 * blk
        return f"v[{b}:{b+15}]" if r is None else f"v{b+r}"

    def NM(self, blk, r=None):
        if self.mode == 3:
            blk = 0
        b = self.vNM + 16 * blk
        return f"v[{b}:{b+15}]" if r is None else f"v{b+r}"

    def P(self, buf, blk, u=None, r=None):
        b = self.vP + 16 * buf + 8 * blk
        if r is not None:
            return f"v{b+r}"
        return f"v[{b+4*u}:{b+4*u+3}]"

    def O(self, sub, db, r=None):
        if sub == 0:
            b = self.vO0 + 16 * db
            return f"v[{b}:{b+15}]" if r is None else f"v{b+r}"
        b = self.aO1 + 16 * db
        return f"a[{b}:{b+15}]" if r is None else f"a{b+r}"

    def Q(self, sub, s):
        b = self.aQ + 32 * sub + 4 * s
        return f"a[{b}:{b+3}]"

    def Kf(self, kb, s):
        b = self.aK + 32 * kb + 4 * s
        return f"a[{b}:{b+3}]"

    def Vf(self, kb, u, db, e=None):
        b = self.aV + 32 * kb + 16 * u + 4 * db
        if e is None:
            return f"a[{b}:{b+3}]"
        return f"a[{b+2*e}:{b+2*e+1}]"

    def srd(self, s):
        return f"s[{s}:{s+3}]"

    def dma(self, vreg, srd, soff, j):
        nt = " nt" if self.nt else ""
        return f"buffer_load_dwordx4 v{vreg}, {self.srd(srd)}, s{soff} offen offset:{1024*j}{nt} lds"

    def dma_group_k(self, srd, soff, m0expr):
        return [m0expr] + [self.dma(self.vKdma + j, srd, soff, j) for j in range(4)]

    def dma_group_v(self, srd, soff, m0expr):
        return [m0expr] + [self.dma(self.vVdma, srd, soff, j) for j in range(4)]

    def kreads(self, slot):
        out = []
        nkb = 1 if self.mode == 1 else 2
        for kb in range(nkb):
            for s in range(8):
                out.append(f"ds_read_b128 {self.Kf(kb, s)}, v{self.vKrd+s} offset:{kb*32768 + slot*8192}")
        return out

    def vreads(self, slot):
        out = []
        nkb = 1 if self.mode == 1 else 2
        for kb in range(nkb):
            for u in range(2):
                for db in range(4):
                    for e in range(2):
                        out.append(f"ds_read_b64_tr_b16 {self.Vf(kb, u, db, e)}, v{self.vVrd+db} "
                                   f"offset:{kb*32768 + slot*8192 + 4096*u + 2048*e}")
        return out

    def qk_mfmas(self, sbuf, cinit=None):
        out = []
        for blk in range(2):
            for s in range(8):
                a = self.Kf(0 if self.mode == 1 else blk, s)
                b = self.Q(blk if self.mode == 1 else 0, s)
                c = (cinit if cinit is not None else self.NM(blk)) if s == 0 else self.S(sbuf, blk)
                out.append(f"v_mfma_f32_32x32x16_bf16 {self.S(sbuf, blk)}, {a}, {b}, {c}")
        return out

    def pv_mfmas(self, pbuf):
        out = []
        if self.mode == 1:
            for blk in range(2):
                for u in range(2):
                    for db in range(4):
                        o = self.O(blk, db)
                        out.append(f"v_mfma_f32_32x32x16_bf16 {o}, {self.Vf(0, u, db)}, {self.P(pbuf, blk, u)}, {o}")
        else:
            for blk in range(2):
                for u in range(2):
                    for db in range(4):
                        o = self.O(0, db)
                        out.append(f"v_mfma_f32_32x32x16_bf16 {o}, {self.Vf(blk, u, db)}, {self.P(pbuf, blk, u)}, {o}")
        return out

    def cross_half(self, op, x, t0, t1):
        self.e(f"v_mov_b32 v{t0}, v{x}")
        self.e(f"v_mov_b32 v{t1}, v{x}")
        self.e("s_nop 1")
        self.e(f"v_permlane32_swap_b32 v{t0}, v{t1}")
        self.e("s_nop 1")
        self.e(f"{op} v{x}, v{t0}, v{t1}")

    def maxchain(self, dst, regs, first=True):
        regs = list(regs)
        if first:
            self.e(f"v_max3_f32 v{dst}, {regs[0]}, {regs[1]}, {regs[2]}")
            regs = regs[3:]
        while len(regs) >= 2:
            self.e(f"v_max3_f32 v{dst}, v{dst}, {regs[0]}, {regs[1]}")
            regs = regs[2:]
        if regs:
            self.e(f"v_max_f32 v{dst}, v{dst}, {regs[0]}")

    def softmax_plain(self, srcs, pbuf, blk, ts, sub_reg=None):
        T = self.vT
        for i in range(8):
            t0, t1 = T + (2 * i) % 8, T + (2 * i + 1) % 8
            if sub_reg is not None:
                self.e(f"v_sub_f32 v{t0}, {srcs[2*i]}, v{sub_reg}")
                self.e(f"v_sub_f32 v{t1}, {srcs[2*i+1]}, v{sub_reg}")
                self.e(f"v_exp_f32 v{t0}, v{t0}")
                self.e(f"v_exp_f32 v{t1}, v{t1}")
            else:
                self.e(f"v_exp_f32 v{t0}, {srcs[2*i]}")
                self.e(f"v_exp_f32 v{t1}, {srcs[2*i+1]}")
            self.e("s_nop 0")
            if i == 0:
                self.e(f"v_add_f32 v{ts}, v{t0}, v{t1}")
            else:
                self.e(f"v_add_f32 v{ts}, v{ts}, v{t0}")
                self.e(f"v_add_f32 v{ts}, v{ts}, v{t1}")
            self.e(f"v_cvt_pk_bf16_f32 {self.P(pbuf, blk, r=i)}, v{t0}, v{t1}")

    def prologue(self):
        e = self.e
        m = self.mode
        T = self.vT
        e("s_cmp_ge_u32 s2, 256")
        e("s_cbranch_scc1 L_end")
        e("s_load_dwordx16 s[16:31], s[0:1], 0")
        e("v_lshrrev_b32 v1, 6, v0")
        e("v_and_b32 v0, 63, v0")
        e(f"v_readfirstlane_b32 s{self.sW}, v1")
        e("s_and_b32 s6, s2, 7")
        e("s_lshr_b32 s7, s2, 3")
        e("s_and_b32 s5, s7, 1")
        e("s_lshr_b32 s7, s7, 1")
        e("s_lshl_b32 s7, s7, 3")
        e("s_or_b32 s4, s7, s6")
        e(f"v_and_b32 v{T}, 31, v0")
        e(f"v_lshrrev_b32 v{T+1}, 5, v0")
        e(f"v_lshlrev_b32 v{T+2}, 8, v{T}")
        e(f"v_lshl_or_b32 v{self.vQoff}, v{T+1}, 4, v{T+2}")
        e(f"v_and_b32 v{T+3}, 15, v0")
        e(f"v_xor_b32 v{T+4}, v{T+1}, v{T+3}")
        e(f"v_lshl_or_b32 v{self.vKrd}, v{T+4}, 4, v{T+2}")
        e(f"s_lshr_b32 s8, s{self.sW}, 1")
        e(f"s_and_b32 s9, s{self.sW}, 1")
        e("s_lshl_b32 s10, s8, 15")
        if m == 1:
            e(f"v_add_u32 v{self.vKrd}, s10, v{self.vKrd}")
        for s in range(1, 8):
            e(f"v_xor_b32 v{self.vKrd+s}, {s << 5}, v{self.vKrd}")
        e(f"v_bfe_u32 v{T+4}, v0, 2, 2")
        e(f"v_lshl_add_u32 v{T+5}, v{T+1}, 2, v{T+4}")
        e(f"v_lshlrev_b32 v{T+5}, 8, v{T+5}")
        e(f"v_lshl_or_b32 v{T+5}, v{T+4}, 6, v{T+5}")
        e(f"v_bfe_u32 v{T+6}, v0, 4, 1")
        e(f"v_lshl_or_b32 v{T+5}, v{T+6}, 5, v{T+5}")
        e(f"v_and_b32 v{T+6}, 3, v0")
        e(f"v_lshl_or_b32 v{T+5}, v{T+6}, 3, v{T+5}")
        e(f"v_add_u32 v{self.vVrd}, {self.LDS_V}, v{T+5}")
        if m == 1:
            e(f"v_add_u32 v{self.vVrd}, s10, v{self.vVrd}")
        for db in range(1, 4):
            e(f"v_xor_b32 v{self.vVrd+db}, {db << 6}, v{self.vVrd}")
        e(f"v_lshrrev_b32 v{T+4}, 4, v0")
        e(f"v_xor_b32 v{T+5}, v{T+3}, v{T+4}")
        e(f"v_lshlrev_b32 v{T+6}, 8, v{T+4}")
        e(f"v_lshl_or_b32 v{self.vKdma}, v{T+5}, 4, v{T+6}")
        for j in range(1, 4):
            e(f"v_xor_b32 v{self.vKdma+j}, {j << 6}, v{self.vKdma}")
        e(f"v_lshlrev_b32 v{T+5}, 2, v{T+4}")
        e(f"v_xor_b32 v{T+5}, v{T+3}, v{T+5}")
        e(f"v_lshl_or_b32 v{self.vVdma}, v{T+5}, 4, v{T+6}")
        e(f"v_lshlrev_b32 v{T+7}, 6, v{T}")
        e(f"v_lshl_or_b32 v{T+7}, v{T+1}, 3, v{T+7}")
        e("s_lshl_b32 s11, s9, 12")
        e(f"s_add_u32 s{self.sKdst}, s10, s11")
        e(f"s_add_u32 s{self.sVdst}, s{self.sKdst}, {self.LDS_V}")
        e(f"s_lshl_b32 s{self.sKoff}, s{self.sW}, 12")
        e(f"s_mov_b32 s{self.sVoff}, s{self.sKoff}")
        e(f"s_mov_b32 s{self.sThr}, {f32hex(2.0**14)}")
        e(f"s_mov_b32 s{self.sC}, {f32hex(128**-0.5 * math.log2(math.e))}")
        e(f"s_mov_b32 s{self.sCnt}, 0")
        if m == 1:
            e("s_lshl_b32 s12, s9, 1")
            e("s_add_u32 s13, s12, s8")
            e(f"s_lshl_b32 s{self.sH0}, s13, 13")
            e("s_xor_b32 s13, s13, 1")
            e(f"s_lshl_b32 s{self.sH1}, s13, 13")
        else:
            e(f"s_lshl_b32 s{self.sH0}, s{self.sW}, 13")
        e("s_lshl_b32 s6, s4, 19")
        e("s_lshl_b32 s7, s4, 16")
        e("s_lshl_b32 s12, s5, 15")
        e("s_add_u32 s7, s7, s12")
        e("s_lshl_b32 s12, s4, 13")
        e("s_lshr_b32 s13, s4, 2")
        e("s_lshl_b32 s13, s13, 11")
        e("s_waitcnt lgkmcnt(0)")

        def mk(srd, ptr, off, size):
            e(f"s_add_u32 s{srd}, s{ptr}, s{off}")
            e(f"s_addc_u32 s{srd+1}, s{ptr+1}, 0")
            e(f"s_and_b32 s{srd+1}, s{srd+1}, 0xffff")
            e(f"s_mov_b32 s{srd+2}, {size}")
            e(f"s_mov_b32 s{srd+3}, 0x00020000")

        mk(self.sQ, 16, 7, 32768)
        nsub = 2 if m == 1 else 1
        for sub in range(nsub):
            for s in range(8):
                b = self.vS + 32 * sub + 4 * s
                e(f"buffer_load_dwordx4 v[{b}:{b+3}], v{self.vQoff}, {self.srd(self.sQ)}, "
                  f"s{self.sH0 if sub == 0 else self.sH1} offen offset:{32*s}")
        mk(self.sM, 26, 13, 2048)
        for a in range(4):
            b = self.vX + 2 * a
            e(f"buffer_load_dwordx2 v[{b}:{b+1}], v{T+7}, {self.srd(self.sM)}, 0 offen offset:{16*a}")
        mk(self.sKT, 22, 12, 8192)
        mk(self.sK, 18, 6, 524288)
        mk(self.sVT, 24, 12, 8192)
        mk(self.sV, 20, 6, 524288)
        mk(self.sO, 28, 7, 32768)

        def grp(lst):
            e(lst[0])
            e("s_nop 0")
            for x in lst[1:]:
                e(x)

        grp(self.dma_group_k(self.sKT, self.sKoff, f"s_add_u32 m0, s{self.sKoff}, {self.LDS_T}"))
        grp(self.dma_group_k(self.sK, self.sKoff, f"s_add_u32 m0, s{self.sKdst}, 0"))
        e(f"s_add_u32 s{self.sKoff}, s{self.sKoff}, 16384")
        grp(self.dma_group_v(self.sVT, 11, f"s_add_u32 m0, s{self.sVdst}, {3*8192}"))
        for i in range(3):
            grp(self.dma_group_k(self.sK, self.sKoff, f"s_add_u32 m0, s{self.sKdst}, {(i+1)*8192}"))
            e(f"s_add_u32 s{self.sKoff}, s{self.sKoff}, 16384")
            grp(self.dma_group_v(self.sV, self.sVoff, f"s_add_u32 m0, s{self.sVdst}, {i*8192}"))
            e(f"s_add_u32 s{self.sVoff}, s{self.sVoff}, 16384")
        for r in range(64):
            e(f"v_mov_b32 v{self.vO0+r}, 0")
        if m == 1:
            for r in range(64):
                e(f"v_accvgpr_write_b32 a{self.aO1+r}, 0")
        for r in range(8):
            e(f"v_mov_b32 {self.P(1, 1, r=r)}, 0")
        e(f"v_mov_b32 v{self.vL}, 0")
        e(f"v_mov_b32 v{self.vL+1}, 0")
        e(f"v_mov_b32 v{self.vTS+1}, 0")
        e("s_waitcnt vmcnt(40)")
        for i in range(32 * nsub):
            src = self.vS + i
            t0, t1 = T + (2 * i) % 6, T + (2 * i + 1) % 6
            e(f"v_lshlrev_b32 v{t0}, 16, v{src}")
            e(f"v_and_b32 v{t1}, 0xffff0000, v{src}")
            e(f"v_mul_f32 v{t0}, s{self.sC}, v{t0}")
            e(f"v_mul_f32 v{t1}, s{self.sC}, v{t1}")
            e(f"v_cvt_pk_bf16_f32 v{t0}, v{t0}, v{t1}")
            e(f"v_accvgpr_write_b32 a{self.aQ+i}, v{t0}")
        e("s_waitcnt vmcnt(36)")
        e(f"s_mov_b32 s12, {f32hex(-1e9)}")
        e(f"s_mov_b32 s13, {f32hex(math.log2(math.e))}")
        for a in range(4):
            for dd in range(2):
                src = self.vX + 2 * a + dd
                r0 = 4 * a + 2 * dd
                d0, d1 = self.vNM + r0, self.vNM + r0 + 1
                e(f"v_lshlrev_b32 v{d0}, 16, v{src}")
                e(f"v_and_b32 v{d1}, 0xffff0000, v{src}")
                for d in (d0, d1):
                    e(f"v_sub_f32 v{d}, 1.0, v{d}")
                    e(f"v_mul_f32 v{d}, s12, v{d}")
                    e(f"v_mul_f32 v{d}, s13, v{d}")
        for s in range(8):
            if m == 1:
                e(f"v_subrev_u32 v{self.vX+s}, s10, v{self.vKrd+s}")
                e(f"v_add_u32 v{self.vX+s}, {self.LDS_T}, v{self.vX+s}")
            else:
                e(f"v_add_u32 v{self.vX+s}, {self.LDS_T}, v{self.vKrd+s}")
        e("s_waitcnt vmcnt(24)")
        e("s_barrier")
        for s in range(8):
            b = self.aV + 4 * s
            e(f"ds_read_b128 a[{b}:{b+3}], v{self.vX+s}")
        for x in self.kreads(0):
            e(x)
        e(f"s_waitcnt lgkmcnt({8 if m == 1 else 15})")
        if m == 3:
            e("s_waitcnt lgkmcnt(0)")
        nm0 = f"v[{self.vNM}:{self.vNM+15}]"
        for s in range(8):
            b = self.aV + 4 * s
            c = nm0 if s == 0 else self.S(1, 0)
            e(f"v_mfma_f32_32x32x16_bf16 {self.S(1, 0)}, a[{b}:{b+3}], {self.Q(0, s)}, {c}")
        e("s_waitcnt lgkmcnt(0)")
        for x in self.qk_mfmas(0, cinit="0"):
            e(x)
        for x in self.vreads(3):
            e(x)
        e("s_nop 7")
        e("s_nop 7")
        mx0, mx1 = self.vX, self.vX + 1
        self.maxchain(mx0, [self.S(1, 0, r) for r in range(16)])
        self.maxchain(mx0, [self.S(0, 0, r) for r in range(16)], first=False)
        if m == 1:
            self.maxchain(mx1, [self.S(0, 1, r) for r in range(16)])
            self.cross_half("v_max_f32", mx0, T, T + 1)
            self.cross_half("v_max_f32", mx1, T, T + 1)
        else:
            self.maxchain(mx0, [self.S(0, 1, r) for r in range(16)], first=False)
            self.cross_half("v_max_f32", mx0, T, T + 1)
            mx1 = mx0
        for blk in range(2):
            mx = mx0 if blk == 0 else mx1
            if blk == 0 or m == 1:
                for r in range(16):
                    e(f"v_sub_f32 {self.NM(blk, r)}, 0, v{mx}")
            for r in range(16):
                e(f"v_sub_f32 {self.S(0, blk, r)}, {self.S(0, blk, r)}, v{mx}")
        self.softmax_plain([self.S(1, 0, r) for r in range(16)], 1, 0, self.vTS, sub_reg=mx0)
        e("s_branch L_it3")

    def iteration(self, q):
        e = self.e
        m = self.mode
        T = self.vT
        pb = q & 1
        nb = pb ^ 1
        fill = [[] for _ in range(32)]
        exp_gap = [min(31, (i * self.exp_end) // 32) for i in range(32)]
        pend = []
        seq = []
        for i in range(32):
            seq.append(("exp", i))
        for i in range(32):
            blk, r = i >> 4, i & 15
            t = T + (i % 8)
            fill[exp_gap[i]].append(f"v_exp_f32 v{t}, {self.S(nb, blk, r)}")
        for i in range(32):
            blk, r = i >> 4, i & 15
            t = T + (i % 8)
            tp = T + ((i - 1) % 8)
            g = min(31, exp_gap[i] + 1)
            ts = self.vTS + blk
            if r == 0:
                pass
            elif r == 1:
                fill[g].append(f"v_add_f32 v{ts}, v{tp}, v{t}")
            else:
                fill[g].append(f"v_add_f32 v{ts}, v{ts}, v{t}")
            if r & 1:
                fill[g].append(f"v_cvt_pk_bf16_f32 {self.P(nb, blk, r=r >> 1)}, v{tp}, v{t}")
        fill[0].insert(0, f"v_add_f32 v{self.vL}, v{self.vL}, v{self.vTS}")
        if m == 1:
            fill[1].insert(0, f"v_add_f32 v{self.vL+1}, v{self.vL+1}, v{self.vTS+1}")
        else:
            fill[1].insert(0, f"v_add_f32 v{self.vL}, v{self.vL}, v{self.vTS+1}")
        kr = self.kreads((q + 2) & 3)
        vr = self.vreads((q + 1) & 3)
        kg = self.kread_gaps or ([i for i in range(8)] if m == 1 else [i * 12 // 16 for i in range(16)])
        vg = self.vread_gaps or ([16 + i * 12 // 16 for i in range(16)] if m == 1 else [16 + i * 13 // 32 for i in range(32)])
        for x, g in zip(kr, kg):
            fill[g].append(x)
        for x, g in zip(vr, vg):
            fill[g].append(x)
        dk = self.dma_group_k(self.sK, self.sKoff, f"s_add_u32 m0, s{self.sKdst}, {((q+1)&3)*8192}")
        dv = self.dma_group_v(self.sV, self.sVoff, f"s_add_u32 m0, s{self.sVdst}, {(q&3)*8192}")
        dg = self.dma_gaps
        fill[dg[0]].insert(0, dk[0])
        for j in range(4):
            fill[dg[j]].append(dk[1 + j])
        fill[dg[3]].append(f"s_add_u32 s{self.sKoff}, s{self.sKoff}, 16384")
        fill[dg[4]].insert(0, dv[0])
        for j in range(4):
            fill[dg[4 + j]].append(dv[1 + j])
        fill[dg[7]].append(f"s_add_u32 s{self.sVoff}, s{self.sVoff}, 16384")
        fill[31].append(f"v_max_f32 v{T}, v{self.vTS}, v{self.vTS+1}")
        fill[31].append(f"v_cmp_lt_f32 vcc, s{self.sThr}, v{T}")

        mf = self.pv_mfmas(pb) + self.qk_mfmas(pb)
        self.lab(f"L_it{q}")
        e("s_waitcnt vmcnt(16) lgkmcnt(0)")
        e("s_barrier")
        for i in range(32):
            if i == 16:
                if q == 3:
                    e(f"s_add_u32 s{self.sCnt}, s{self.sCnt}, 1")
                    e(f"s_cmp_eq_u32 s{self.sCnt}, 9")
                    e("s_cbranch_scc1 L_epi")
                e("s_waitcnt lgkmcnt(0)")
            e(mf[i])
            for x in fill[i]:
                e(x)
        e(f"s_cbranch_vccnz L_rare{q}")
        self.lab(f"L_back{q}")
        if q == 3:
            e("s_branch L_it0")

    def rare(self, q):
        e = self.e
        m = self.mode
        T = self.vT
        pb = q & 1
        nb = pb ^ 1
        X = self.vX
        self.lab(f"L_rare{q}")
        e("s_nop 7")
        e("s_nop 7")
        groups = [[0], [1]] if m == 1 else [[0, 1]]
        for gi, blks in enumerate(groups):
            d, al = X, X + 1
            first = True
            for blk in blks:
                self.maxchain(d, [self.S(nb, blk, r) for r in range(16)], first=first)
                first = False
            self.cross_half("v_max_f32", d, T, T + 1)
            e(f"v_max_f32 v{d}, 0, v{d}")
            e(f"v_exp_f32 v{al}, -v{d}")
            for r in range(16):
                e(f"v_sub_f32 {self.NM(gi, r)}, {self.NM(gi, r)}, v{d}")
            for blk in blks:
                for r in range(16):
                    e(f"v_sub_f32 {self.S(pb, blk, r)}, {self.S(pb, blk, r)}, v{d}")
            e(f"v_mul_f32 v{self.vL+gi}, v{self.vL+gi}, v{al}")
            for db in range(4):
                for r in range(16):
                    o = self.O(gi, db, r)
                    if gi == 0:
                        e(f"v_mul_f32 {o}, {o}, v{al}")
                    else:
                        e(f"v_accvgpr_read_b32 v{X+2}, {o}")
                        e(f"v_mul_f32 v{X+2}, v{X+2}, v{al}")
                        e(f"v_accvgpr_write_b32 {o}, v{X+2}")
            for blk in blks:
                self.softmax_plain([self.S(nb, blk, r) for r in range(16)], nb, blk, self.vTS + blk, sub_reg=d)
        e("s_nop 1")
        e(f"s_branch L_back{q}")

    def store_out(self, src):
        e = self.e
        base = self.vS
        for db in range(4):
            for jj in range(2):
                b = base + 8 * db + 4 * jj
                for k in range(4):
                    r = 8 * jj + 2 * k
                    e(f"v_cvt_pk_bf16_f32 v{b+k}, {src(db, r)}, {src(db, r+1)}")
        e("s_nop 1")
        for db in range(4):
            for jj in range(2):
                b = base + 8 * db + 4 * jj
                e(f"v_permlane32_swap_b32 v{b}, v{b+2}")
                e(f"v_permlane32_swap_b32 v{b+1}, v{b+3}")
        e("s_nop 1")
        for db in range(4):
            for jj in range(2):
                b = base + 8 * db + 4 * jj
                e(f"buffer_store_dwordx4 v[{b}:{b+3}], v{self.vQoff}, {self.srd(self.sO)}, s{self.sH0} offen offset:{64*db+32*jj}")

    def epilogue(self):
        e = self.e
        m = self.mode
        T = self.vT
        X = self.vX
        self.lab("L_epi")
        if m == 3:
            e("s_nop 7")
            self.cross_half("v_add_f32", self.vL, T, T + 1)
            e(f"v_rcp_f32 v{X}, v{self.vL}")
            e("s_nop 0")
            for i in range(0, 64, 2):
                b = self.vO0 + i
                e(f"v_pk_mul_f32 v[{b}:{b+1}], v[{b}:{b+1}], v[{X}:{X+1}] op_sel_hi:[1,0]")
            self.store_out(lambda db, r: self.O(0, db, r))
        else:
            e(f"s_lshl_b32 s6, s{self.sW}, 14")
            e(f"v_lshlrev_b32 v{X}, 4, v0")
            e(f"v_add_u32 v{X}, s6, v{X}")
            e(f"v_xor_b32 v{X+1}, 0x8000, v{X}")
            e(f"s_lshl_b32 s6, s{self.sW}, 9")
            e(f"s_add_u32 s6, s6, {self.LDS_T}")
            e(f"v_lshlrev_b32 v{X+2}, 3, v0")
            e(f"v_add_u32 v{X+2}, s6, v{X+2}")
            e(f"v_xor_b32 v{X+3}, 0x400, v{X+2}")
            e(f"v_mov_b32 v{X+4}, {self.NM(1, 0)}")
            e(f"v_mov_b32 v{X+5}, v{self.vL+1}")
            e("s_waitcnt vmcnt(0) lgkmcnt(0)")
            e("s_barrier")
            e(f"ds_write_b64 v{X+2}, v[{X+4}:{X+5}]")
            for i in range(16):
                b = self.aO1 + 4 * i
                e(f"ds_write_b128 v{X}, a[{b}:{b+3}] offset:{1024*i}")
            e("s_waitcnt lgkmcnt(0)")
            e("s_barrier")
            e(f"ds_read_b64 v[{X+4}:{X+5}], v{X+3}")
            R = self.vS + 32
            e(f"v_mov_b32 v{X+6}, {self.NM(0, 0)}")
            for i in range(16):
                b = R + 4 * i
                e(f"ds_read_b128 v[{b}:{b+3}], v{X+1} offset:{1024*i}")
            e("s_waitcnt lgkmcnt(15)")
            e("s_waitcnt lgkmcnt(15)")
            e(f"v_min_f32 v{X+7}, v{X+6}, v{X+4}")
            e(f"v_sub_f32 v{X+8}, v{X+7}, v{X+6}")
            e(f"v_sub_f32 v{X+10}, v{X+7}, v{X+4}")
            e(f"v_exp_f32 v{X+8}, v{X+8}")
            e(f"v_exp_f32 v{X+10}, v{X+10}")
            e("s_nop 0")
            e(f"v_mul_f32 v{X+12}, v{self.vL}, v{X+8}")
            e(f"v_fma_f32 v{X+12}, v{X+5}, v{X+10}, v{X+12}")
            self.cross_half("v_add_f32", X + 12, T, T + 1)
            e(f"v_rcp_f32 v{X+12}, v{X+12}")
            e("s_nop 0")
            e(f"v_mul_f32 v{X+8}, v{X+8}, v{X+12}")
            e(f"v_mul_f32 v{X+10}, v{X+10}, v{X+12}")
            for i in range(0, 64, 2):
                b = self.vO0 + i
                e(f"v_pk_mul_f32 v[{b}:{b+1}], v[{b}:{b+1}], v[{X+8}:{X+9}] op_sel_hi:[1,0]")
            for i in range(0, 64, 2):
                b = self.vO0 + i
                if i % 4 == 0:
                    e(f"s_waitcnt lgkmcnt({15 - i // 4})")
                e(f"v_pk_fma_f32 v[{b}:{b+1}], v[{R+i}:{R+i+1}], v[{X+10}:{X+11}], v[{b}:{b+1}] op_sel_hi:[1,0,1]")
            self.store_out(lambda db, r: self.O(0, db, r))
        self.lab("L_end")
        e("s_endpgm")

    def build(self):
        k = NAME + "_kernel"
        self.prologue()
        pro = list(self.out)
        self.out.append(".p2align 6")
        for _ in range(self.align_pad):
            self.e("s_nop 0")
        its = []
        for q in range(4):
            n0 = len(self.out)
            self.iteration(q)
            its.append(self.out[n0:])
        n0 = len(self.out)
        self.epilogue()
        epi = self.out[n0:]
        rares = []
        for q in range(4):
            n0 = len(self.out)
            self.rare(q)
            rares.append(self.out[n0:])
        errs = []

        def upto_exit(lines):
            idx = [i for i, l in enumerate(lines) if "L_epi" in l][0]
            return lines[: idx + 1]

        errs += check(pro + its[3] + its[0] + its[1] + its[2] + its[3] + its[0], "main")
        errs += check(its[2] + upto_exit(its[3]) + epi, "exit")
        for q in range(4):
            errs += check(its[q] + rares[q] + its[(q + 1) & 3], f"rare{q}")
        for x in errs:
            print("HAZARD", x, file=sys.stderr)
        text = HEADER + f"; @launch grid=(256,1,1) block=(256,1,1) lds={self.LDS_BYTES}\n"
        text += '.amdgcn_target "amdgcn-amd-amdhsa--gfx950"\n.text\n'
        text += f".globl {k}\n.p2align 8\n.type {k},@function\n{k}:\n"
        text += "\n".join(self.out) + "\n"
        text += f""".section .rodata,"a"
.p2align 6
.amdhsa_kernel {k}
  .amdhsa_next_free_vgpr 512
  .amdhsa_next_free_sgpr 96
  .amdhsa_accum_offset 256
  .amdhsa_group_segment_fixed_size 0
  .amdhsa_kernarg_size 72
  .amdhsa_user_sgpr_count 2
  .amdhsa_user_sgpr_kernarg_segment_ptr 1
  .amdhsa_system_sgpr_workgroup_id_x 1
.end_amdhsa_kernel
"""
        return text, errs


if __name__ == "__main__":
    import argparse
    ap = argparse.ArgumentParser()
    ap.add_argument("-o", default=f"cdna_kernels/{NAME}.s")
    ap.add_argument("--mode", type=int, default=1)
    ap.add_argument("--nt", action="store_true")
    ap.add_argument("--exp_end", type=int, default=28)
    ap.add_argument("--pad", type=int, default=0)
    ap.add_argument("--dma", default=None)
    a = ap.parse_args()
    dg = [int(x) for x in a.dma.split(",")] if a.dma else None
    g = Gen(mode=a.mode, nt=a.nt, exp_end=a.exp_end, align_pad=a.pad, dma_gaps=dg)
    text, errs = g.build()
    open(a.o, "w").write(text)
    print("wrote", a.o, len(text), "bytes;", len(errs), "hazard reports")
```

```python
import math
import struct
import sys

from hazard import check

NAME = "standalone__tree_speculative_verify_tree_attention_over_candidate_token_tree__sampling"

HEADER = """; Kernarg layout for this problem (72 bytes, ptrs only, base s[0:1]):
; grid=ceil(out_elems/256), lds=0). Harness parses it; keep it on one line.
"""


def f32hex(x):
    return "0x%08x" % struct.unpack("<I", struct.pack("<f", x))[0]


class Gen:
    def __init__(self, mode=1, nt=False, dma_gaps=None, exp_end=28, align_pad=0, swap_order=False,
                 kread_gaps=None, vread_gaps=None, diag=False, nomfma=False, nodma=False):
        self.diag = diag
        self.nomfma = nomfma
        self.nodma = nodma
        self.mode = mode
        self.nt = nt
        self.exp_end = exp_end
        self.align_pad = align_pad
        self.swap_order = swap_order
        self.dma_gaps = dma_gaps or [8, 9, 10, 11, 12, 13, 14, 15]
        self.kread_gaps = kread_gaps
        self.vread_gaps = vread_gaps
        self.out = []
        self.vKrd = 2
        self.vVrd = 10
        self.vKdma = 14
        self.vVdma = 18
        self.vQoff = 19
        self.vL = 20
        self.vTS = 22
        self.vT = 24
        self.vS = 32
        self.vNM = 96
        self.vP = 128
        self.vO0 = 160
        self.vX = 224
        self.aO1 = 0
        self.aQ = 64
        self.aK = 128
        self.aV = 192
        self.sK, self.sV, self.sQ, self.sKT, self.sVT, self.sM, self.sO = 36, 40, 44, 48, 52, 56, 60
        self.sKoff, self.sVoff, self.sKdst, self.sVdst, self.sCnt, self.sThr, self.sC = 64, 65, 66, 67, 68, 69, 70
        self.sH0, self.sH1, self.sW = 71, 72, 3
        self.LDS_K, self.LDS_V, self.LDS_T = 0, 65536, 131072
        self.LDS_BYTES = 147456

    def e(self, s):
        self.out.append("    " + s)

    def stamp(self, lane):
        if self.diag:
            self.e("s_memtime s[80:81]")
            self.e("s_waitcnt lgkmcnt(0)")
            self.e(f"v_writelane_b32 v254, s80, {lane}")

    def lab(self, s):
        self.out.append(s + ":")

    def S(self, buf, blk, r=None):
        b = self.vS + 32 * buf + 16 * blk
        return f"v[{b}:{b+15}]" if r is None else f"v{b+r}"

    def NM(self, blk, r=None):
        if self.mode == 3:
            blk = 0
        b = self.vNM + 16 * blk
        return f"v[{b}:{b+15}]" if r is None else f"v{b+r}"

    def P(self, buf, blk, u=None, r=None):
        b = self.vP + 16 * buf + 8 * blk
        if r is not None:
            return f"v{b+r}"
        return f"v[{b+4*u}:{b+4*u+3}]"

    def O(self, sub, db, r=None):
        if sub == 0:
            b = self.vO0 + 16 * db
            return f"v[{b}:{b+15}]" if r is None else f"v{b+r}"
        b = self.aO1 + 16 * db
        return f"a[{b}:{b+15}]" if r is None else f"a{b+r}"

    def Q(self, sub, s):
        b = self.aQ + 32 * sub + 4 * s
        return f"a[{b}:{b+3}]"

    def Kf(self, kb, s):
        b = self.aK + 32 * kb + 4 * s
        return f"a[{b}:{b+3}]"

    def Vf(self, kb, u, db, e=None):
        b = self.aV + 32 * kb + 16 * u + 4 * db
        if e is None:
            return f"a[{b}:{b+3}]"
        return f"a[{b+2*e}:{b+2*e+1}]"

    def srd(self, s):
        return f"s[{s}:{s+3}]"

    def dma(self, vreg, srd, soff, j):
        nt = " nt" if self.nt else ""
        return f"buffer_load_dwordx4 v{vreg}, {self.srd(srd)}, s{soff} offen offset:{1024*j}{nt} lds"

    def dma_group_k(self, srd, soff, m0expr):
        return [m0expr] + [self.dma(self.vKdma + j, srd, soff, j) for j in range(4)]

    def dma_group_v(self, srd, soff, m0expr):
        return [m0expr] + [self.dma(self.vVdma, srd, soff, j) for j in range(4)]

    def kreads(self, slot):
        out = []
        nkb = 1 if self.mode == 1 else 2
        for kb in range(nkb):
            for s in range(8):
                out.append(f"ds_read_b128 {self.Kf(kb, s)}, v{self.vKrd+s} offset:{kb*32768 + slot*8192}")
        return out

    def vreads(self, slot):
        out = []
        nkb = 1 if self.mode == 1 else 2
        for kb in range(nkb):
            for u in range(2):
                for db in range(4):
                    for e in range(2):
                        out.append(f"ds_read_b64_tr_b16 {self.Vf(kb, u, db, e)}, v{self.vVrd+db} "
                                   f"offset:{kb*32768 + slot*8192 + 4096*u + 2048*e}")
        return out

    def qk_mfmas(self, sbuf, cinit=None):
        out = []
        for blk in range(2):
            for s in range(8):
                a = self.Kf(0 if self.mode == 1 else blk, s)
                b = self.Q(blk if self.mode == 1 else 0, s)
                c = (cinit if cinit is not None else self.NM(blk)) if s == 0 else self.S(sbuf, blk)
                out.append(f"v_mfma_f32_32x32x16_bf16 {self.S(sbuf, blk)}, {a}, {b}, {c}")
        return out

    def pv_mfmas(self, pbuf):
        out = []
        if self.mode == 1:
            for blk in range(2):
                for u in range(2):
                    for db in range(4):
                        o = self.O(blk, db)
                        out.append(f"v_mfma_f32_32x32x16_bf16 {o}, {self.Vf(0, u, db)}, {self.P(pbuf, blk, u)}, {o}")
        else:
            for blk in range(2):
                for u in range(2):
                    for db in range(4):
                        o = self.O(0, db)
                        out.append(f"v_mfma_f32_32x32x16_bf16 {o}, {self.Vf(blk, u, db)}, {self.P(pbuf, blk, u)}, {o}")
        return out

    def cross_half(self, op, x, t0, t1):
        self.e(f"v_mov_b32 v{t0}, v{x}")
        self.e(f"v_mov_b32 v{t1}, v{x}")
        self.e("s_nop 1")
        self.e(f"v_permlane32_swap_b32 v{t0}, v{t1}")
        self.e("s_nop 1")
        self.e(f"{op} v{x}, v{t0}, v{t1}")

    def maxchain(self, dst, regs, first=True):
        regs = list(regs)
        if first:
            self.e(f"v_max3_f32 v{dst}, {regs[0]}, {regs[1]}, {regs[2]}")
            regs = regs[3:]
        while len(regs) >= 2:
            self.e(f"v_max3_f32 v{dst}, v{dst}, {regs[0]}, {regs[1]}")
            regs = regs[2:]
        if regs:
            self.e(f"v_max_f32 v{dst}, v{dst}, {regs[0]}")

    def softmax_plain(self, srcs, pbuf, blk, ts, sub_reg=None):
        T = self.vT
        for i in range(8):
            t0, t1 = T + (2 * i) % 8, T + (2 * i + 1) % 8
            if sub_reg is not None:
                self.e(f"v_sub_f32 v{t0}, {srcs[2*i]}, v{sub_reg}")
                self.e(f"v_sub_f32 v{t1}, {srcs[2*i+1]}, v{sub_reg}")
                self.e(f"v_exp_f32 v{t0}, v{t0}")
                self.e(f"v_exp_f32 v{t1}, v{t1}")
            else:
                self.e(f"v_exp_f32 v{t0}, {srcs[2*i]}")
                self.e(f"v_exp_f32 v{t1}, {srcs[2*i+1]}")
            self.e("s_nop 0")
            if i == 0:
                self.e(f"v_add_f32 v{ts}, v{t0}, v{t1}")
            else:
                self.e(f"v_add_f32 v{ts}, v{ts}, v{t0}")
                self.e(f"v_add_f32 v{ts}, v{ts}, v{t1}")
            self.e(f"v_cvt_pk_bf16_f32 {self.P(pbuf, blk, r=i)}, v{t0}, v{t1}")

    def prologue(self):
        e = self.e
        m = self.mode
        T = self.vT
        e("s_cmp_ge_u32 s2, 256")
        e("s_cbranch_scc1 L_end")
        e("s_load_dwordx16 s[16:31], s[0:1], 0")
        if self.diag:
            e("s_load_dwordx2 s[84:85], s[0:1], 64")
            e("s_memtime s[80:81]")
            e("s_memrealtime s[86:87]")
            e("s_mov_b32 s90, 2")
            e("v_mov_b32 v254, 0")
            e("v_mov_b32 v255, 0")
        e("v_lshrrev_b32 v1, 6, v0")
        e("v_and_b32 v0, 63, v0")
        e(f"v_readfirstlane_b32 s{self.sW}, v1")
        e("s_and_b32 s6, s2, 7")
        e("s_lshr_b32 s7, s2, 3")
        e("s_and_b32 s5, s7, 1")
        e("s_lshr_b32 s7, s7, 1")
        e("s_lshl_b32 s7, s7, 3")
        e("s_or_b32 s4, s7, s6")
        e(f"v_and_b32 v{T}, 31, v0")
        e(f"v_lshrrev_b32 v{T+1}, 5, v0")
        e(f"v_lshlrev_b32 v{T+2}, 8, v{T}")
        e(f"v_lshl_or_b32 v{self.vQoff}, v{T+1}, 4, v{T+2}")
        e(f"v_and_b32 v{T+3}, 15, v0")
        e(f"v_xor_b32 v{T+4}, v{T+1}, v{T+3}")
        e(f"v_lshl_or_b32 v{self.vKrd}, v{T+4}, 4, v{T+2}")
        e(f"s_lshr_b32 s8, s{self.sW}, 1")
        e(f"s_and_b32 s9, s{self.sW}, 1")
        e("s_lshl_b32 s10, s8, 15")
        if m == 1:
            e(f"v_add_u32 v{self.vKrd}, s10, v{self.vKrd}")
        for s in range(1, 8):
            e(f"v_xor_b32 v{self.vKrd+s}, {s << 5}, v{self.vKrd}")
        e(f"v_bfe_u32 v{T+4}, v0, 2, 2")
        e(f"v_lshl_add_u32 v{T+5}, v{T+1}, 2, v{T+4}")
        e(f"v_lshlrev_b32 v{T+5}, 8, v{T+5}")
        e(f"v_lshl_or_b32 v{T+5}, v{T+4}, 6, v{T+5}")
        e(f"v_bfe_u32 v{T+6}, v0, 4, 1")
        e(f"v_lshl_or_b32 v{T+5}, v{T+6}, 5, v{T+5}")
        e(f"v_and_b32 v{T+6}, 3, v0")
        e(f"v_lshl_or_b32 v{T+5}, v{T+6}, 3, v{T+5}")
        e(f"v_add_u32 v{self.vVrd}, {self.LDS_V}, v{T+5}")
        if m == 1:
            e(f"v_add_u32 v{self.vVrd}, s10, v{self.vVrd}")
        for db in range(1, 4):
            e(f"v_xor_b32 v{self.vVrd+db}, {db << 6}, v{self.vVrd}")
        e(f"v_lshrrev_b32 v{T+4}, 4, v0")
        e(f"v_xor_b32 v{T+5}, v{T+3}, v{T+4}")
        e(f"v_lshlrev_b32 v{T+6}, 8, v{T+4}")
        e(f"v_lshl_or_b32 v{self.vKdma}, v{T+5}, 4, v{T+6}")
        for j in range(1, 4):
            e(f"v_xor_b32 v{self.vKdma+j}, {j << 6}, v{self.vKdma}")
        e(f"v_lshlrev_b32 v{T+5}, 2, v{T+4}")
        e(f"v_xor_b32 v{T+5}, v{T+3}, v{T+5}")
        e(f"v_lshl_or_b32 v{self.vVdma}, v{T+5}, 4, v{T+6}")
        e(f"v_lshlrev_b32 v{T+7}, 6, v{T}")
        e(f"v_lshl_or_b32 v{T+7}, v{T+1}, 3, v{T+7}")
        e("s_lshl_b32 s11, s9, 12")
        e(f"s_add_u32 s{self.sKdst}, s10, s11")
        e(f"s_add_u32 s{self.sVdst}, s{self.sKdst}, {self.LDS_V}")
        e(f"s_lshl_b32 s{self.sKoff}, s{self.sW}, 12")
        e(f"s_mov_b32 s{self.sVoff}, s{self.sKoff}")
        e(f"s_mov_b32 s{self.sThr}, {f32hex(2.0**14)}")
        e(f"s_mov_b32 s{self.sC}, {f32hex(128**-0.5 * math.log2(math.e))}")
        e(f"s_mov_b32 s{self.sCnt}, 0")
        if m == 1:
            e("s_lshl_b32 s12, s9, 1")
            e("s_add_u32 s13, s12, s8")
            e(f"s_lshl_b32 s{self.sH0}, s13, 13")
            e("s_xor_b32 s13, s13, 1")
            e(f"s_lshl_b32 s{self.sH1}, s13, 13")
        else:
            e(f"s_lshl_b32 s{self.sH0}, s{self.sW}, 13")
        e("s_lshl_b32 s6, s4, 19")
        e("s_lshl_b32 s7, s4, 16")
        e("s_lshl_b32 s12, s5, 15")
        e("s_add_u32 s7, s7, s12")
        e("s_lshl_b32 s12, s4, 13")
        e("s_lshr_b32 s13, s4, 2")
        e("s_lshl_b32 s13, s13, 11")
        e("s_waitcnt lgkmcnt(0)")
        if self.diag:
            e("v_writelane_b32 v254, s80, 0")
            e("v_writelane_b32 v255, s86, 0")

        def mk(srd, ptr, off, size):
            e(f"s_add_u32 s{srd}, s{ptr}, s{off}")
            e(f"s_addc_u32 s{srd+1}, s{ptr+1}, 0")
            e(f"s_and_b32 s{srd+1}, s{srd+1}, 0xffff")
            e(f"s_mov_b32 s{srd+2}, {size}")
            e(f"s_mov_b32 s{srd+3}, 0x00020000")

        self.stamp(40)
        mk(self.sQ, 16, 7, 32768)
        nsub = 2 if m == 1 else 1
        for sub in range(nsub):
            for s in range(8):
                b = self.vS + 32 * sub + 4 * s
                e(f"buffer_load_dwordx4 v[{b}:{b+3}], v{self.vQoff}, {self.srd(self.sQ)}, "
                  f"s{self.sH0 if sub == 0 else self.sH1} offen offset:{32*s}")
        mk(self.sM, 26, 13, 2048)
        for a in range(4):
            b = self.vX + 2 * a
            e(f"buffer_load_dwordx2 v[{b}:{b+1}], v{T+7}, {self.srd(self.sM)}, 0 offen offset:{16*a}")
        self.stamp(41)
        mk(self.sKT, 22, 12, 8192)
        mk(self.sK, 18, 6, 524288)
        mk(self.sVT, 24, 12, 8192)
        mk(self.sV, 20, 6, 524288)
        mk(self.sO, 28, 7, 32768)

        def grp(lst):
            e(lst[0])
            e("s_nop 0")
            for x in lst[1:]:
                e(x)

        grp(self.dma_group_k(self.sKT, self.sKoff, f"s_add_u32 m0, s{self.sKoff}, {self.LDS_T}"))
        grp(self.dma_group_k(self.sK, self.sKoff, f"s_add_u32 m0, s{self.sKdst}, 0"))
        e(f"s_add_u32 s{self.sKoff}, s{self.sKoff}, 16384")
        grp(self.dma_group_v(self.sVT, 11, f"s_add_u32 m0, s{self.sVdst}, {3*8192}"))
        for i in range(3):
            grp(self.dma_group_k(self.sK, self.sKoff, f"s_add_u32 m0, s{self.sKdst}, {(i+1)*8192}"))
            e(f"s_add_u32 s{self.sKoff}, s{self.sKoff}, 16384")
            grp(self.dma_group_v(self.sV, self.sVoff, f"s_add_u32 m0, s{self.sVdst}, {i*8192}"))
            e(f"s_add_u32 s{self.sVoff}, s{self.sVoff}, 16384")
        self.stamp(42)
        for r in range(64):
            e(f"v_mov_b32 v{self.vO0+r}, 0")
        if m == 1:
            for r in range(64):
                e(f"v_accvgpr_write_b32 a{self.aO1+r}, 0")
        for r in range(8):
            e(f"v_mov_b32 {self.P(1, 1, r=r)}, 0")
        e(f"v_mov_b32 v{self.vL}, 0")
        e(f"v_mov_b32 v{self.vL+1}, 0")
        e(f"v_mov_b32 v{self.vTS+1}, 0")
        self.stamp(43)
        e("s_waitcnt vmcnt(40)")
        self.stamp(44)
        for i in range(32 * nsub):
            src = self.vS + i
            t0, t1 = T + (2 * i) % 6, T + (2 * i + 1) % 6
            e(f"v_lshlrev_b32 v{t0}, 16, v{src}")
            e(f"v_and_b32 v{t1}, 0xffff0000, v{src}")
            e(f"v_mul_f32 v{t0}, s{self.sC}, v{t0}")
            e(f"v_mul_f32 v{t1}, s{self.sC}, v{t1}")
            e(f"v_cvt_pk_bf16_f32 v{t0}, v{t0}, v{t1}")
            e(f"v_accvgpr_write_b32 a{self.aQ+i}, v{t0}")
        self.stamp(45)
        e("s_waitcnt vmcnt(36)")
        e(f"s_mov_b32 s12, {f32hex(-1e9)}")
        e(f"s_mov_b32 s13, {f32hex(math.log2(math.e))}")
        for a in range(4):
            for dd in range(2):
                src = self.vX + 2 * a + dd
                r0 = 4 * a + 2 * dd
                d0, d1 = self.vNM + r0, self.vNM + r0 + 1
                e(f"v_lshlrev_b32 v{d0}, 16, v{src}")
                e(f"v_and_b32 v{d1}, 0xffff0000, v{src}")
                for d in (d0, d1):
                    e(f"v_sub_f32 v{d}, 1.0, v{d}")
                    e(f"v_mul_f32 v{d}, s12, v{d}")
                    e(f"v_mul_f32 v{d}, s13, v{d}")
        for s in range(8):
            if m == 1:
                e(f"v_subrev_u32 v{self.vX+s}, s10, v{self.vKrd+s}")
                e(f"v_add_u32 v{self.vX+s}, {self.LDS_T}, v{self.vX+s}")
            else:
                e(f"v_add_u32 v{self.vX+s}, {self.LDS_T}, v{self.vKrd+s}")
        self.stamp(46)
        e("s_waitcnt vmcnt(24)")
        self.stamp(47)
        e("s_barrier")
        self.stamp(48)
        for s in range(8):
            b = self.aV + 4 * s
            e(f"ds_read_b128 a[{b}:{b+3}], v{self.vX+s}")
        for x in self.kreads(0):
            e(x)
        e(f"s_waitcnt lgkmcnt({8 if m == 1 else 15})")
        if m == 3:
            e("s_waitcnt lgkmcnt(0)")
        nm0 = f"v[{self.vNM}:{self.vNM+15}]"
        for s in range(8):
            b = self.aV + 4 * s
            c = nm0 if s == 0 else self.S(1, 0)
            e(f"v_mfma_f32_32x32x16_bf16 {self.S(1, 0)}, a[{b}:{b+3}], {self.Q(0, s)}, {c}")
        e("s_waitcnt lgkmcnt(0)")
        for x in self.qk_mfmas(0, cinit="0"):
            e(x)
        for x in self.vreads(3):
            e(x)
        e("s_nop 7")
        e("s_nop 7")
        self.stamp(49)
        mx0, mx1 = self.vX, self.vX + 1
        self.maxchain(mx0, [self.S(1, 0, r) for r in range(16)])
        self.maxchain(mx0, [self.S(0, 0, r) for r in range(16)], first=False)
        if m == 1:
            self.maxchain(mx1, [self.S(0, 1, r) for r in range(16)])
            self.cross_half("v_max_f32", mx0, T, T + 1)
            self.cross_half("v_max_f32", mx1, T, T + 1)
        else:
            self.maxchain(mx0, [self.S(0, 1, r) for r in range(16)], first=False)
            self.cross_half("v_max_f32", mx0, T, T + 1)
            mx1 = mx0
        for blk in range(2):
            mx = mx0 if blk == 0 else mx1
            if blk == 0 or m == 1:
                for r in range(16):
                    e(f"v_sub_f32 {self.NM(blk, r)}, 0, v{mx}")
            for r in range(16):
                e(f"v_sub_f32 {self.S(0, blk, r)}, {self.S(0, blk, r)}, v{mx}")
        self.softmax_plain([self.S(1, 0, r) for r in range(16)], 1, 0, self.vTS, sub_reg=mx0)
        e("s_branch L_it3")

    def iteration(self, q):
        e = self.e
        m = self.mode
        T = self.vT
        pb = q & 1
        nb = pb ^ 1
        fill = [[] for _ in range(32)]
        exp_gap = [min(31, (i * self.exp_end) // 32) for i in range(32)]
        pend = []
        seq = []
        for i in range(32):
            seq.append(("exp", i))
        for i in range(32):
            blk, r = i >> 4, i & 15
            t = T + (i % 8)
            fill[exp_gap[i]].append(f"v_exp_f32 v{t}, {self.S(nb, blk, r)}")
        for i in range(32):
            blk, r = i >> 4, i & 15
            t = T + (i % 8)
            tp = T + ((i - 1) % 8)
            g = min(31, exp_gap[i] + 1)
            ts = self.vTS + blk
            if r == 0:
                pass
            elif r == 1:
                fill[g].append(f"v_add_f32 v{ts}, v{tp}, v{t}")
            else:
                fill[g].append(f"v_add_f32 v{ts}, v{ts}, v{t}")
            if r & 1:
                fill[g].append(f"v_cvt_pk_bf16_f32 {self.P(nb, blk, r=r >> 1)}, v{tp}, v{t}")
        fill[0].insert(0, f"v_add_f32 v{self.vL}, v{self.vL}, v{self.vTS}")
        if m == 1:
            fill[1].insert(0, f"v_add_f32 v{self.vL+1}, v{self.vL+1}, v{self.vTS+1}")
        else:
            fill[1].insert(0, f"v_add_f32 v{self.vL}, v{self.vL}, v{self.vTS+1}")
        kr = self.kreads((q + 2) & 3)
        vr = self.vreads((q + 1) & 3)
        kg = self.kread_gaps or ([i for i in range(8)] if m == 1 else [i * 12 // 16 for i in range(16)])
        vg = self.vread_gaps or ([16 + i * 12 // 16 for i in range(16)] if m == 1 else [16 + i * 13 // 32 for i in range(32)])
        for x, g in zip(kr, kg):
            fill[g].append(x)
        for x, g in zip(vr, vg):
            fill[g].append(x)
        dk = self.dma_group_k(self.sK, self.sKoff, f"s_add_u32 m0, s{self.sKdst}, {((q+1)&3)*8192}")
        dv = self.dma_group_v(self.sV, self.sVoff, f"s_add_u32 m0, s{self.sVdst}, {(q&3)*8192}")
        dg = self.dma_gaps
        fill[dg[0]].insert(0, dk[0])
        for j in range(4):
            fill[dg[j]].append(dk[1 + j])
        fill[dg[3]].append(f"s_add_u32 s{self.sKoff}, s{self.sKoff}, 16384")
        fill[dg[4]].insert(0, dv[0])
        for j in range(4):
            fill[dg[4 + j]].append(dv[1 + j])
        fill[dg[7]].append(f"s_add_u32 s{self.sVoff}, s{self.sVoff}, 16384")
        fill[31].append(f"v_max_f32 v{T}, v{self.vTS}, v{self.vTS+1}")
        fill[31].append(f"v_cmp_lt_f32 vcc, s{self.sThr}, v{T}")

        mf = self.pv_mfmas(pb) + self.qk_mfmas(pb)
        self.lab(f"L_it{q}")
        if self.diag:
            e("s_memtime s[80:81]")
        e("s_waitcnt vmcnt(16) lgkmcnt(0)")
        e("s_barrier")
        if self.diag:
            e("s_memtime s[82:83]")
            e("v_cmp_eq_u32 s[92:93], s90, v0")
            e("v_mov_b32 v253, s80")
            e("s_nop 1")
            e("v_cndmask_b32 v254, v254, v253, s[92:93]")
        for i in range(32):
            if i == 16:
                if q == 3:
                    e(f"s_add_u32 s{self.sCnt}, s{self.sCnt}, 1")
                    e(f"s_cmp_eq_u32 s{self.sCnt}, 9")
                    e("s_cbranch_scc1 L_epi")
                e("s_waitcnt lgkmcnt(0)")
                if self.diag:
                    e("v_mov_b32 v253, s82")
                    e("v_cndmask_b32 v255, v255, v253, s[92:93]")
                    e("s_add_u32 s90, s90, 1")
            if not self.nomfma:
                e(mf[i])
            for x in fill[i]:
                if self.nodma and " lds" in x:
                    continue
                e(x)
        e(f"s_cbranch_vccnz L_rare{q}")
        self.lab(f"L_back{q}")
        if q == 3:
            e("s_branch L_it0")

    def rare(self, q):
        e = self.e
        m = self.mode
        T = self.vT
        pb = q & 1
        nb = pb ^ 1
        X = self.vX
        self.lab(f"L_rare{q}")
        e("s_nop 7")
        e("s_nop 7")
        groups = [[0], [1]] if m == 1 else [[0, 1]]
        for gi, blks in enumerate(groups):
            d, al = X, X + 1
            first = True
            for blk in blks:
                self.maxchain(d, [self.S(nb, blk, r) for r in range(16)], first=first)
                first = False
            self.cross_half("v_max_f32", d, T, T + 1)
            e(f"v_max_f32 v{d}, 0, v{d}")
            e(f"v_exp_f32 v{al}, -v{d}")
            for r in range(16):
                e(f"v_sub_f32 {self.NM(gi, r)}, {self.NM(gi, r)}, v{d}")
            for blk in blks:
                for r in range(16):
                    e(f"v_sub_f32 {self.S(pb, blk, r)}, {self.S(pb, blk, r)}, v{d}")
            e(f"v_mul_f32 v{self.vL+gi}, v{self.vL+gi}, v{al}")
            for db in range(4):
                for r in range(16):
                    o = self.O(gi, db, r)
                    if gi == 0:
                        e(f"v_mul_f32 {o}, {o}, v{al}")
                    else:
                        e(f"v_accvgpr_read_b32 v{X+2}, {o}")
                        e(f"v_mul_f32 v{X+2}, v{X+2}, v{al}")
                        e(f"v_accvgpr_write_b32 {o}, v{X+2}")
            for blk in blks:
                self.softmax_plain([self.S(nb, blk, r) for r in range(16)], nb, blk, self.vTS + blk, sub_reg=d)
        e("s_nop 1")
        e(f"s_branch L_back{q}")

    def store_out(self, src):
        e = self.e
        base = self.vS
        for db in range(4):
            for jj in range(2):
                b = base + 8 * db + 4 * jj
                for k in range(4):
                    r = 8 * jj + 2 * k
                    e(f"v_cvt_pk_bf16_f32 v{b+k}, {src(db, r)}, {src(db, r+1)}")
        e("s_nop 1")
        for db in range(4):
            for jj in range(2):
                b = base + 8 * db + 4 * jj
                e(f"v_permlane32_swap_b32 v{b}, v{b+2}")
                e(f"v_permlane32_swap_b32 v{b+1}, v{b+3}")
        e("s_nop 1")
        for db in range(4):
            for jj in range(2):
                b = base + 8 * db + 4 * jj
                e(f"buffer_store_dwordx4 v[{b}:{b+3}], v{self.vQoff}, {self.srd(self.sO)}, s{self.sH0} offen offset:{64*db+32*jj}")

    def epilogue(self):
        e = self.e
        m = self.mode
        T = self.vT
        X = self.vX
        self.lab("L_epi")
        if m == 3:
            e("s_nop 7")
            self.cross_half("v_add_f32", self.vL, T, T + 1)
            e(f"v_rcp_f32 v{X}, v{self.vL}")
            e("s_nop 0")
            for i in range(0, 64, 2):
                b = self.vO0 + i
                e(f"v_pk_mul_f32 v[{b}:{b+1}], v[{b}:{b+1}], v[{X}:{X+1}] op_sel_hi:[1,0]")
            self.store_out(lambda db, r: self.O(0, db, r))
        else:
            e(f"s_lshl_b32 s6, s{self.sW}, 14")
            e(f"v_lshlrev_b32 v{X}, 4, v0")
            e(f"v_add_u32 v{X}, s6, v{X}")
            e(f"v_xor_b32 v{X+1}, 0x8000, v{X}")
            e(f"s_lshl_b32 s6, s{self.sW}, 9")
            e(f"s_add_u32 s6, s6, {self.LDS_T}")
            e(f"v_lshlrev_b32 v{X+2}, 3, v0")
            e(f"v_add_u32 v{X+2}, s6, v{X+2}")
            e(f"v_xor_b32 v{X+3}, 0x400, v{X+2}")
            e(f"v_mov_b32 v{X+4}, {self.NM(1, 0)}")
            e(f"v_mov_b32 v{X+5}, v{self.vL+1}")
            self.stamp(50)
            e("s_waitcnt vmcnt(0) lgkmcnt(0)")
            e("s_barrier")
            self.stamp(51)
            e(f"ds_write_b64 v{X+2}, v[{X+4}:{X+5}]")
            for i in range(16):
                b = self.aO1 + 4 * i
                e(f"ds_write_b128 v{X}, a[{b}:{b+3}] offset:{1024*i}")
            e("s_waitcnt lgkmcnt(0)")
            self.stamp(52)
            e("s_barrier")
            self.stamp(53)
            e(f"ds_read_b64 v[{X+4}:{X+5}], v{X+3}")
            R = self.vS + 32
            e(f"v_mov_b32 v{X+6}, {self.NM(0, 0)}")
            for i in range(16):
                b = R + 4 * i
                e(f"ds_read_b128 v[{b}:{b+3}], v{X+1} offset:{1024*i}")
            e("s_waitcnt lgkmcnt(15)")
            e("s_waitcnt lgkmcnt(15)")
            e(f"v_min_f32 v{X+7}, v{X+6}, v{X+4}")
            e(f"v_sub_f32 v{X+8}, v{X+7}, v{X+6}")
            e(f"v_sub_f32 v{X+10}, v{X+7}, v{X+4}")
            e(f"v_exp_f32 v{X+8}, v{X+8}")
            e(f"v_exp_f32 v{X+10}, v{X+10}")
            e("s_nop 0")
            e(f"v_mul_f32 v{X+12}, v{self.vL}, v{X+8}")
            e(f"v_fma_f32 v{X+12}, v{X+5}, v{X+10}, v{X+12}")
            self.cross_half("v_add_f32", X + 12, T, T + 1)
            e(f"v_rcp_f32 v{X+12}, v{X+12}")
            e("s_nop 0")
            e(f"v_mul_f32 v{X+8}, v{X+8}, v{X+12}")
            e(f"v_mul_f32 v{X+10}, v{X+10}, v{X+12}")
            for i in range(0, 64, 2):
                b = self.vO0 + i
                e(f"v_pk_mul_f32 v[{b}:{b+1}], v[{b}:{b+1}], v[{X+8}:{X+9}] op_sel_hi:[1,0]")
            for i in range(0, 64, 2):
                b = self.vO0 + i
                if i % 4 == 0:
                    e(f"s_waitcnt lgkmcnt({15 - i // 4})")
                e(f"v_pk_fma_f32 v[{b}:{b+1}], v[{R+i}:{R+i+1}], v[{X+10}:{X+11}], v[{b}:{b+1}] op_sel_hi:[1,0,1]")
            self.stamp(54)
            self.store_out(lambda db, r: self.O(0, db, r))
        if self.diag:
            self.stamp(55)
            e("s_waitcnt vmcnt(0) lgkmcnt(0)")
            e("s_memtime s[80:81]")
            e("s_memrealtime s[86:87]")
            e("s_waitcnt lgkmcnt(0)")
            e("v_writelane_b32 v254, s80, 1")
            e("v_writelane_b32 v255, s86, 1")
            e("s_lshl_b32 s6, s2, 2")
            e(f"s_add_u32 s6, s6, s{self.sW}")
            e("s_lshl_b32 s6, s6, 9")
            e("s_add_u32 s84, s84, s6")
            e("s_addc_u32 s85, s85, 0")
            e("s_and_b32 s85, s85, 0xffff")
            e("s_mov_b32 s86, 512")
            e("s_mov_b32 s87, 0x00020000")
            e("v_lshlrev_b32 v1, 3, v0")
            e("buffer_store_dwordx2 v[254:255], v1, s[84:87], 0 offen")
        self.lab("L_end")
        e("s_endpgm")

    def build(self):
        k = NAME + "_kernel"
        self.prologue()
        pro = list(self.out)
        self.out.append(".p2align 6")
        for _ in range(self.align_pad):
            self.e("s_nop 0")
        its = []
        for q in range(4):
            n0 = len(self.out)
            self.iteration(q)
            its.append(self.out[n0:])
        n0 = len(self.out)
        self.epilogue()
        epi = self.out[n0:]
        rares = []
        for q in range(4):
            n0 = len(self.out)
            self.rare(q)
            rares.append(self.out[n0:])
        errs = []

        def upto_exit(lines):
            idx = [i for i, l in enumerate(lines) if "L_epi" in l][0]
            return lines[: idx + 1]

        errs += check(pro + its[3] + its[0] + its[1] + its[2] + its[3] + its[0], "main")
        errs += check(its[2] + upto_exit(its[3]) + epi, "exit")
        for q in range(4):
            errs += check(its[q] + rares[q] + its[(q + 1) & 3], f"rare{q}")
        for x in errs:
            print("HAZARD", x, file=sys.stderr)
        text = HEADER + f"; @launch grid=(256,1,1) block=(256,1,1) lds={self.LDS_BYTES}\n"
        text += '.amdgcn_target "amdgcn-amd-amdhsa--gfx950"\n.text\n'
        text += f".globl {k}\n.p2align 8\n.type {k},@function\n{k}:\n"
        text += "\n".join(self.out) + "\n"
        text += f""".section .rodata,"a"
.p2align 6
.amdhsa_kernel {k}
  .amdhsa_next_free_vgpr 512
  .amdhsa_next_free_sgpr 96
  .amdhsa_accum_offset 256
  .amdhsa_group_segment_fixed_size 0
  .amdhsa_kernarg_size 72
  .amdhsa_user_sgpr_count 2
  .amdhsa_user_sgpr_kernarg_segment_ptr 1
  .amdhsa_system_sgpr_workgroup_id_x 1
.end_amdhsa_kernel
"""
        return text, errs


if __name__ == "__main__":
    import argparse
    ap = argparse.ArgumentParser()
    ap.add_argument("-o", default=f"cdna_kernels/{NAME}.s")
    ap.add_argument("--mode", type=int, default=1)
    ap.add_argument("--nt", action="store_true")
    ap.add_argument("--exp_end", type=int, default=28)
    ap.add_argument("--pad", type=int, default=0)
    ap.add_argument("--dma", default=None)
    ap.add_argument("--diag", action="store_true")
    ap.add_argument("--nomfma", action="store_true")
    ap.add_argument("--nodma", action="store_true")
    a = ap.parse_args()
    dg = [int(x) for x in a.dma.split(",")] if a.dma else None
    g = Gen(mode=a.mode, nt=a.nt, exp_end=a.exp_end, align_pad=a.pad, dma_gaps=dg, diag=a.diag, nomfma=a.nomfma, nodma=a.nodma)
    text, errs = g.build()
    open(a.o, "w").write(text)
    print("wrote", a.o, len(text), "bytes;", len(errs), "hazard reports")
```

```python
import math
import struct
import sys

from hazard import check

NAME = "standalone__tree_speculative_verify_tree_attention_over_candidate_token_tree__sampling"

HEADER = """; Kernarg layout for this problem (72 bytes, ptrs only, base s[0:1]):
; grid=ceil(out_elems/256), lds=0). Harness parses it; keep it on one line.
"""


def f32hex(x):
    return "0x%08x" % struct.unpack("<I", struct.pack("<f", x))[0]


class Gen:
    def __init__(self, mode=1, nt=False, dma_gaps=None, exp_end=28, align_pad=0, swap_order=False,
                 kread_gaps=None, vread_gaps=None, diag=False, nomfma=False, nodma=False, dbgtime=False):
        self.dbgtime = dbgtime
        self.diag = diag
        self.nomfma = nomfma
        self.nodma = nodma
        self.mode = mode
        self.nt = nt
        self.exp_end = exp_end
        self.align_pad = align_pad
        self.swap_order = swap_order
        self.dma_gaps = dma_gaps or [8, 9, 10, 11, 12, 13, 14, 15]
        self.kread_gaps = kread_gaps
        self.vread_gaps = vread_gaps
        self.out = []
        self.vKrd = 2
        self.vVrd = 10
        self.vKdma = 14
        self.vVdma = 18
        self.vQoff = 19
        self.vL = 20
        self.vTS = 22
        self.vT = 24
        self.vS = 32
        self.vNM = 96
        self.vP = 128
        self.vO0 = 160
        self.vX = 224
        self.aO1 = 0
        self.aQ = 64
        self.aK = 128
        self.aV = 192
        self.sK, self.sV, self.sQ, self.sKT, self.sVT, self.sM, self.sO = 36, 40, 44, 48, 52, 56, 60
        self.sKoff, self.sVoff, self.sKdst, self.sVdst, self.sCnt, self.sThr, self.sC = 64, 65, 66, 67, 68, 69, 70
        self.sH0, self.sH1, self.sW = 71, 72, 3
        self.LDS_K, self.LDS_V, self.LDS_T = 0, 65536, 131072
        self.LDS_BYTES = 147456

    def e(self, s):
        self.out.append("    " + s)

    def stamp(self, lane):
        if self.diag:
            self.e("s_memtime s[80:81]")
            self.e("s_waitcnt lgkmcnt(0)")
            self.e(f"v_writelane_b32 v254, s80, {lane}")

    def lab(self, s):
        self.out.append(s + ":")

    def S(self, buf, blk, r=None):
        b = self.vS + 32 * buf + 16 * blk
        return f"v[{b}:{b+15}]" if r is None else f"v{b+r}"

    def NM(self, blk, r=None):
        if self.mode == 3:
            blk = 0
        b = self.vNM + 16 * blk
        return f"v[{b}:{b+15}]" if r is None else f"v{b+r}"

    def P(self, buf, blk, u=None, r=None):
        b = self.vP + 16 * buf + 8 * blk
        if r is not None:
            return f"v{b+r}"
        return f"v[{b+4*u}:{b+4*u+3}]"

    def O(self, sub, db, r=None):
        if sub == 0:
            b = self.vO0 + 16 * db
            return f"v[{b}:{b+15}]" if r is None else f"v{b+r}"
        b = self.aO1 + 16 * db
        return f"a[{b}:{b+15}]" if r is None else f"a{b+r}"

    def Q(self, sub, s):
        b = self.aQ + 32 * sub + 4 * s
        return f"a[{b}:{b+3}]"

    def Kf(self, kb, s):
        b = self.aK + 32 * kb + 4 * s
        return f"a[{b}:{b+3}]"

    def Vf(self, kb, u, db, e=None):
        b = self.aV + 32 * kb + 16 * u + 4 * db
        if e is None:
            return f"a[{b}:{b+3}]"
        return f"a[{b+2*e}:{b+2*e+1}]"

    def srd(self, s):
        return f"s[{s}:{s+3}]"

    def dma(self, vreg, srd, soff, j):
        nt = " nt" if self.nt else ""
        return f"buffer_load_dwordx4 v{vreg}, {self.srd(srd)}, s{soff} offen offset:{1024*j}{nt} lds"

    def dma_group_k(self, srd, soff, m0expr):
        return [m0expr] + [self.dma(self.vKdma + j, srd, soff, j) for j in range(4)]

    def dma_group_v(self, srd, soff, m0expr):
        return [m0expr] + [self.dma(self.vVdma, srd, soff, j) for j in range(4)]

    def kreads(self, slot):
        out = []
        nkb = 1 if self.mode == 1 else 2
        for kb in range(nkb):
            for s in range(8):
                out.append(f"ds_read_b128 {self.Kf(kb, s)}, v{self.vKrd+s} offset:{kb*32768 + slot*8192}")
        return out

    def vreads(self, slot):
        out = []
        nkb = 1 if self.mode == 1 else 2
        for kb in range(nkb):
            for u in range(2):
                for db in range(4):
                    for e in range(2):
                        out.append(f"ds_read_b64_tr_b16 {self.Vf(kb, u, db, e)}, v{self.vVrd+db} "
                                   f"offset:{kb*32768 + slot*8192 + 4096*u + 2048*e}")
        return out

    def qk_mfmas(self, sbuf, cinit=None):
        out = []
        for blk in range(2):
            for s in range(8):
                a = self.Kf(0 if self.mode == 1 else blk, s)
                b = self.Q(blk if self.mode == 1 else 0, s)
                c = (cinit if cinit is not None else self.NM(blk)) if s == 0 else self.S(sbuf, blk)
                out.append(f"v_mfma_f32_32x32x16_bf16 {self.S(sbuf, blk)}, {a}, {b}, {c}")
        return out

    def pv_mfmas(self, pbuf):
        out = []
        if self.mode == 1:
            for blk in range(2):
                for u in range(2):
                    for db in range(4):
                        o = self.O(blk, db)
                        out.append(f"v_mfma_f32_32x32x16_bf16 {o}, {self.Vf(0, u, db)}, {self.P(pbuf, blk, u)}, {o}")
        else:
            for blk in range(2):
                for u in range(2):
                    for db in range(4):
                        o = self.O(0, db)
                        out.append(f"v_mfma_f32_32x32x16_bf16 {o}, {self.Vf(blk, u, db)}, {self.P(pbuf, blk, u)}, {o}")
        return out

    def cross_half(self, op, x, t0, t1):
        self.e(f"v_mov_b32 v{t0}, v{x}")
        self.e(f"v_mov_b32 v{t1}, v{x}")
        self.e("s_nop 1")
        self.e(f"v_permlane32_swap_b32 v{t0}, v{t1}")
        self.e("s_nop 1")
        self.e(f"{op} v{x}, v{t0}, v{t1}")

    def maxchain(self, dst, regs, first=True):
        regs = list(regs)
        if first:
            self.e(f"v_max3_f32 v{dst}, {regs[0]}, {regs[1]}, {regs[2]}")
            regs = regs[3:]
        while len(regs) >= 2:
            self.e(f"v_max3_f32 v{dst}, v{dst}, {regs[0]}, {regs[1]}")
            regs = regs[2:]
        if regs:
            self.e(f"v_max_f32 v{dst}, v{dst}, {regs[0]}")

    def softmax_plain(self, srcs, pbuf, blk, ts, sub_reg=None):
        T = self.vT
        for i in range(8):
            t0, t1 = T + (2 * i) % 8, T + (2 * i + 1) % 8
            if sub_reg is not None:
                self.e(f"v_sub_f32 v{t0}, {srcs[2*i]}, v{sub_reg}")
                self.e(f"v_sub_f32 v{t1}, {srcs[2*i+1]}, v{sub_reg}")
                self.e(f"v_exp_f32 v{t0}, v{t0}")
                self.e(f"v_exp_f32 v{t1}, v{t1}")
            else:
                self.e(f"v_exp_f32 v{t0}, {srcs[2*i]}")
                self.e(f"v_exp_f32 v{t1}, {srcs[2*i+1]}")
            self.e("s_nop 0")
            if i == 0:
                self.e(f"v_add_f32 v{ts}, v{t0}, v{t1}")
            else:
                self.e(f"v_add_f32 v{ts}, v{ts}, v{t0}")
                self.e(f"v_add_f32 v{ts}, v{ts}, v{t1}")
            self.e(f"v_cvt_pk_bf16_f32 {self.P(pbuf, blk, r=i)}, v{t0}, v{t1}")

    def prologue(self):
        e = self.e
        m = self.mode
        T = self.vT
        e("s_cmp_ge_u32 s2, 256")
        e("s_cbranch_scc1 L_end")
        e("s_load_dwordx16 s[16:31], s[0:1], 0")
        if self.dbgtime:
            e("s_memtime s[80:81]")
            e("s_memrealtime s[86:87]")
        if self.diag:
            e("s_load_dwordx2 s[84:85], s[0:1], 64")
            e("s_memtime s[80:81]")
            e("s_memrealtime s[86:87]")
            e("s_mov_b32 s90, 2")
            e("v_mov_b32 v254, 0")
            e("v_mov_b32 v255, 0")
        e("v_lshrrev_b32 v1, 6, v0")
        e("v_and_b32 v0, 63, v0")
        e(f"v_readfirstlane_b32 s{self.sW}, v1")
        e("s_and_b32 s6, s2, 7")
        e("s_lshr_b32 s7, s2, 3")
        e("s_and_b32 s5, s7, 1")
        e("s_lshr_b32 s7, s7, 1")
        e("s_lshl_b32 s7, s7, 3")
        e("s_or_b32 s4, s7, s6")
        e(f"v_and_b32 v{T}, 31, v0")
        e(f"v_lshrrev_b32 v{T+1}, 5, v0")
        e(f"v_lshlrev_b32 v{T+2}, 8, v{T}")
        e(f"v_lshl_or_b32 v{self.vQoff}, v{T+1}, 4, v{T+2}")
        e(f"v_and_b32 v{T+3}, 15, v0")
        e(f"v_xor_b32 v{T+4}, v{T+1}, v{T+3}")
        e(f"v_lshl_or_b32 v{self.vKrd}, v{T+4}, 4, v{T+2}")
        e(f"s_lshr_b32 s8, s{self.sW}, 1")
        e(f"s_and_b32 s9, s{self.sW}, 1")
        e("s_lshl_b32 s10, s8, 15")
        if m == 1:
            e(f"v_add_u32 v{self.vKrd}, s10, v{self.vKrd}")
        for s in range(1, 8):
            e(f"v_xor_b32 v{self.vKrd+s}, {s << 5}, v{self.vKrd}")
        e(f"v_bfe_u32 v{T+4}, v0, 2, 2")
        e(f"v_lshl_add_u32 v{T+5}, v{T+1}, 2, v{T+4}")
        e(f"v_lshlrev_b32 v{T+5}, 8, v{T+5}")
        e(f"v_lshl_or_b32 v{T+5}, v{T+4}, 6, v{T+5}")
        e(f"v_bfe_u32 v{T+6}, v0, 4, 1")
        e(f"v_lshl_or_b32 v{T+5}, v{T+6}, 5, v{T+5}")
        e(f"v_and_b32 v{T+6}, 3, v0")
        e(f"v_lshl_or_b32 v{T+5}, v{T+6}, 3, v{T+5}")
        e(f"v_add_u32 v{self.vVrd}, {self.LDS_V}, v{T+5}")
        if m == 1:
            e(f"v_add_u32 v{self.vVrd}, s10, v{self.vVrd}")
        for db in range(1, 4):
            e(f"v_xor_b32 v{self.vVrd+db}, {db << 6}, v{self.vVrd}")
        e(f"v_lshrrev_b32 v{T+4}, 4, v0")
        e(f"v_xor_b32 v{T+5}, v{T+3}, v{T+4}")
        e(f"v_lshlrev_b32 v{T+6}, 8, v{T+4}")
        e(f"v_lshl_or_b32 v{self.vKdma}, v{T+5}, 4, v{T+6}")
        for j in range(1, 4):
            e(f"v_xor_b32 v{self.vKdma+j}, {j << 6}, v{self.vKdma}")
        e(f"v_lshlrev_b32 v{T+5}, 2, v{T+4}")
        e(f"v_xor_b32 v{T+5}, v{T+3}, v{T+5}")
        e(f"v_lshl_or_b32 v{self.vVdma}, v{T+5}, 4, v{T+6}")
        e(f"v_lshlrev_b32 v{T+7}, 6, v{T}")
        e(f"v_lshl_or_b32 v{T+7}, v{T+1}, 3, v{T+7}")
        e("s_lshl_b32 s11, s9, 12")
        e(f"s_add_u32 s{self.sKdst}, s10, s11")
        e(f"s_add_u32 s{self.sVdst}, s{self.sKdst}, {self.LDS_V}")
        e(f"s_lshl_b32 s{self.sKoff}, s{self.sW}, 12")
        e(f"s_mov_b32 s{self.sVoff}, s{self.sKoff}")
        e(f"s_mov_b32 s{self.sThr}, {f32hex(2.0**14)}")
        e(f"s_mov_b32 s{self.sC}, {f32hex(128**-0.5 * math.log2(math.e))}")
        e(f"s_mov_b32 s{self.sCnt}, 0")
        if m == 1:
            e("s_lshl_b32 s12, s9, 1")
            e("s_add_u32 s13, s12, s8")
            e(f"s_lshl_b32 s{self.sH0}, s13, 13")
            e("s_xor_b32 s13, s13, 1")
            e(f"s_lshl_b32 s{self.sH1}, s13, 13")
        else:
            e(f"s_lshl_b32 s{self.sH0}, s{self.sW}, 13")
        e("s_lshl_b32 s6, s4, 19")
        e("s_lshl_b32 s7, s4, 16")
        e("s_lshl_b32 s12, s5, 15")
        e("s_add_u32 s7, s7, s12")
        e("s_lshl_b32 s12, s4, 13")
        e("s_lshr_b32 s13, s4, 2")
        e("s_lshl_b32 s13, s13, 11")
        e("s_waitcnt lgkmcnt(0)")
        if self.diag:
            e("v_writelane_b32 v254, s80, 0")
            e("v_writelane_b32 v255, s86, 0")

        def mk(srd, ptr, off, size):
            e(f"s_add_u32 s{srd}, s{ptr}, s{off}")
            e(f"s_addc_u32 s{srd+1}, s{ptr+1}, 0")
            e(f"s_and_b32 s{srd+1}, s{srd+1}, 0xffff")
            e(f"s_mov_b32 s{srd+2}, {size}")
            e(f"s_mov_b32 s{srd+3}, 0x00020000")

        self.stamp(40)
        mk(self.sQ, 16, 7, 32768)
        nsub = 2 if m == 1 else 1
        for sub in range(nsub):
            for s in range(8):
                b = self.vS + 32 * sub + 4 * s
                e(f"buffer_load_dwordx4 v[{b}:{b+3}], v{self.vQoff}, {self.srd(self.sQ)}, "
                  f"s{self.sH0 if sub == 0 else self.sH1} offen offset:{32*s}")
        mk(self.sM, 26, 13, 2048)
        for a in range(4):
            b = self.vX + 2 * a
            e(f"buffer_load_dwordx2 v[{b}:{b+1}], v{T+7}, {self.srd(self.sM)}, 0 offen offset:{16*a}")
        self.stamp(41)
        mk(self.sKT, 22, 12, 8192)
        mk(self.sK, 18, 6, 524288)
        mk(self.sVT, 24, 12, 8192)
        mk(self.sV, 20, 6, 524288)
        mk(self.sO, 28, 7, 32768)

        def grp(lst):
            e(lst[0])
            e("s_nop 0")
            for x in lst[1:]:
                e(x)

        grp(self.dma_group_k(self.sKT, self.sKoff, f"s_add_u32 m0, s{self.sKoff}, {self.LDS_T}"))
        grp(self.dma_group_k(self.sK, self.sKoff, f"s_add_u32 m0, s{self.sKdst}, 0"))
        e(f"s_add_u32 s{self.sKoff}, s{self.sKoff}, 16384")
        grp(self.dma_group_v(self.sVT, 11, f"s_add_u32 m0, s{self.sVdst}, {3*8192}"))
        for i in range(3):
            grp(self.dma_group_k(self.sK, self.sKoff, f"s_add_u32 m0, s{self.sKdst}, {(i+1)*8192}"))
            e(f"s_add_u32 s{self.sKoff}, s{self.sKoff}, 16384")
            grp(self.dma_group_v(self.sV, self.sVoff, f"s_add_u32 m0, s{self.sVdst}, {i*8192}"))
            e(f"s_add_u32 s{self.sVoff}, s{self.sVoff}, 16384")
        self.stamp(42)
        for r in range(64):
            e(f"v_mov_b32 v{self.vO0+r}, 0")
        if m == 1:
            for r in range(64):
                e(f"v_accvgpr_write_b32 a{self.aO1+r}, 0")
        for r in range(8):
            e(f"v_mov_b32 {self.P(1, 1, r=r)}, 0")
        e(f"v_mov_b32 v{self.vL}, 0")
        e(f"v_mov_b32 v{self.vL+1}, 0")
        e(f"v_mov_b32 v{self.vTS+1}, 0")
        self.stamp(43)
        e("s_waitcnt vmcnt(40)")
        self.stamp(44)
        for i in range(32 * nsub):
            src = self.vS + i
            t0, t1 = T + (2 * i) % 6, T + (2 * i + 1) % 6
            e(f"v_lshlrev_b32 v{t0}, 16, v{src}")
            e(f"v_and_b32 v{t1}, 0xffff0000, v{src}")
            e(f"v_mul_f32 v{t0}, s{self.sC}, v{t0}")
            e(f"v_mul_f32 v{t1}, s{self.sC}, v{t1}")
            e(f"v_cvt_pk_bf16_f32 v{t0}, v{t0}, v{t1}")
            e(f"v_accvgpr_write_b32 a{self.aQ+i}, v{t0}")
        self.stamp(45)
        e("s_waitcnt vmcnt(36)")
        e(f"s_mov_b32 s12, {f32hex(-1e9)}")
        e(f"s_mov_b32 s13, {f32hex(math.log2(math.e))}")
        for a in range(4):
            for dd in range(2):
                src = self.vX + 2 * a + dd
                r0 = 4 * a + 2 * dd
                d0, d1 = self.vNM + r0, self.vNM + r0 + 1
                e(f"v_lshlrev_b32 v{d0}, 16, v{src}")
                e(f"v_and_b32 v{d1}, 0xffff0000, v{src}")
                for d in (d0, d1):
                    e(f"v_sub_f32 v{d}, 1.0, v{d}")
                    e(f"v_mul_f32 v{d}, s12, v{d}")
                    e(f"v_mul_f32 v{d}, s13, v{d}")
        for s in range(8):
            if m == 1:
                e(f"v_subrev_u32 v{self.vX+s}, s10, v{self.vKrd+s}")
                e(f"v_add_u32 v{self.vX+s}, {self.LDS_T}, v{self.vX+s}")
            else:
                e(f"v_add_u32 v{self.vX+s}, {self.LDS_T}, v{self.vKrd+s}")
        self.stamp(46)
        e("s_waitcnt vmcnt(24)")
        self.stamp(47)
        e("s_barrier")
        self.stamp(48)
        for s in range(8):
            b = self.aV + 4 * s
            e(f"ds_read_b128 a[{b}:{b+3}], v{self.vX+s}")
        for x in self.kreads(0):
            e(x)
        e(f"s_waitcnt lgkmcnt({8 if m == 1 else 15})")
        if m == 3:
            e("s_waitcnt lgkmcnt(0)")
        nm0 = f"v[{self.vNM}:{self.vNM+15}]"
        for s in range(8):
            b = self.aV + 4 * s
            c = nm0 if s == 0 else self.S(1, 0)
            e(f"v_mfma_f32_32x32x16_bf16 {self.S(1, 0)}, a[{b}:{b+3}], {self.Q(0, s)}, {c}")
        e("s_waitcnt lgkmcnt(0)")
        for x in self.qk_mfmas(0, cinit="0"):
            e(x)
        for x in self.vreads(3):
            e(x)
        e("s_nop 7")
        e("s_nop 7")
        self.stamp(49)
        mx0, mx1 = self.vX, self.vX + 1
        self.maxchain(mx0, [self.S(1, 0, r) for r in range(16)])
        self.maxchain(mx0, [self.S(0, 0, r) for r in range(16)], first=False)
        if m == 1:
            self.maxchain(mx1, [self.S(0, 1, r) for r in range(16)])
            self.cross_half("v_max_f32", mx0, T, T + 1)
            self.cross_half("v_max_f32", mx1, T, T + 1)
        else:
            self.maxchain(mx0, [self.S(0, 1, r) for r in range(16)], first=False)
            self.cross_half("v_max_f32", mx0, T, T + 1)
            mx1 = mx0
        for blk in range(2):
            mx = mx0 if blk == 0 else mx1
            if blk == 0 or m == 1:
                for r in range(16):
                    e(f"v_sub_f32 {self.NM(blk, r)}, 0, v{mx}")
            for r in range(16):
                e(f"v_sub_f32 {self.S(0, blk, r)}, {self.S(0, blk, r)}, v{mx}")
        self.softmax_plain([self.S(1, 0, r) for r in range(16)], 1, 0, self.vTS, sub_reg=mx0)
        e("s_branch L_it3")

    def iteration(self, q):
        e = self.e
        m = self.mode
        T = self.vT
        pb = q & 1
        nb = pb ^ 1
        fill = [[] for _ in range(32)]
        exp_gap = [min(31, (i * self.exp_end) // 32) for i in range(32)]
        pend = []
        seq = []
        for i in range(32):
            seq.append(("exp", i))
        for i in range(32):
            blk, r = i >> 4, i & 15
            t = T + (i % 8)
            fill[exp_gap[i]].append(f"v_exp_f32 v{t}, {self.S(nb, blk, r)}")
        for i in range(32):
            blk, r = i >> 4, i & 15
            t = T + (i % 8)
            tp = T + ((i - 1) % 8)
            g = min(31, exp_gap[i] + 1)
            ts = self.vTS + blk
            if r == 0:
                pass
            elif r == 1:
                fill[g].append(f"v_add_f32 v{ts}, v{tp}, v{t}")
            else:
                fill[g].append(f"v_add_f32 v{ts}, v{ts}, v{t}")
            if r & 1:
                fill[g].append(f"v_cvt_pk_bf16_f32 {self.P(nb, blk, r=r >> 1)}, v{tp}, v{t}")
        fill[0].insert(0, f"v_add_f32 v{self.vL}, v{self.vL}, v{self.vTS}")
        if m == 1:
            fill[1].insert(0, f"v_add_f32 v{self.vL+1}, v{self.vL+1}, v{self.vTS+1}")
        else:
            fill[1].insert(0, f"v_add_f32 v{self.vL}, v{self.vL}, v{self.vTS+1}")
        kr = self.kreads((q + 2) & 3)
        vr = self.vreads((q + 1) & 3)
        kg = self.kread_gaps or ([i for i in range(8)] if m == 1 else [i * 12 // 16 for i in range(16)])
        vg = self.vread_gaps or ([16 + i * 12 // 16 for i in range(16)] if m == 1 else [16 + i * 13 // 32 for i in range(32)])
        for x, g in zip(kr, kg):
            fill[g].append(x)
        for x, g in zip(vr, vg):
            fill[g].append(x)
        dk = self.dma_group_k(self.sK, self.sKoff, f"s_add_u32 m0, s{self.sKdst}, {((q+1)&3)*8192}")
        dv = self.dma_group_v(self.sV, self.sVoff, f"s_add_u32 m0, s{self.sVdst}, {(q&3)*8192}")
        dg = self.dma_gaps
        fill[dg[0]].insert(0, dk[0])
        for j in range(4):
            fill[dg[j]].append(dk[1 + j])
        fill[dg[3]].append(f"s_add_u32 s{self.sKoff}, s{self.sKoff}, 16384")
        fill[dg[4]].insert(0, dv[0])
        for j in range(4):
            fill[dg[4 + j]].append(dv[1 + j])
        fill[dg[7]].append(f"s_add_u32 s{self.sVoff}, s{self.sVoff}, 16384")
        fill[31].append(f"v_max_f32 v{T}, v{self.vTS}, v{self.vTS+1}")
        fill[31].append(f"v_cmp_lt_f32 vcc, s{self.sThr}, v{T}")

        mf = self.pv_mfmas(pb) + self.qk_mfmas(pb)
        self.lab(f"L_it{q}")
        if self.diag:
            e("s_memtime s[80:81]")
        e("s_waitcnt vmcnt(16) lgkmcnt(0)")
        e("s_barrier")
        if self.diag:
            e("s_memtime s[82:83]")
            e("v_cmp_eq_u32 s[92:93], s90, v0")
            e("v_mov_b32 v253, s80")
            e("s_nop 1")
            e("v_cndmask_b32 v254, v254, v253, s[92:93]")
        for i in range(32):
            if i == 16:
                if q == 3:
                    e(f"s_add_u32 s{self.sCnt}, s{self.sCnt}, 1")
                    e(f"s_cmp_eq_u32 s{self.sCnt}, 9")
                    e("s_cbranch_scc1 L_epi")
                e("s_waitcnt lgkmcnt(0)")
                if self.diag:
                    e("v_mov_b32 v253, s82")
                    e("v_cndmask_b32 v255, v255, v253, s[92:93]")
                    e("s_add_u32 s90, s90, 1")
            if not self.nomfma:
                e(mf[i])
            for x in fill[i]:
                if self.nodma and " lds" in x:
                    continue
                e(x)
        e(f"s_cbranch_vccnz L_rare{q}")
        self.lab(f"L_back{q}")
        if q == 3:
            e("s_branch L_it0")

    def rare(self, q):
        e = self.e
        m = self.mode
        T = self.vT
        pb = q & 1
        nb = pb ^ 1
        X = self.vX
        self.lab(f"L_rare{q}")
        e("s_nop 7")
        e("s_nop 7")
        groups = [[0], [1]] if m == 1 else [[0, 1]]
        for gi, blks in enumerate(groups):
            d, al = X, X + 1
            first = True
            for blk in blks:
                self.maxchain(d, [self.S(nb, blk, r) for r in range(16)], first=first)
                first = False
            self.cross_half("v_max_f32", d, T, T + 1)
            e(f"v_max_f32 v{d}, 0, v{d}")
            e(f"v_exp_f32 v{al}, -v{d}")
            for r in range(16):
                e(f"v_sub_f32 {self.NM(gi, r)}, {self.NM(gi, r)}, v{d}")
            for blk in blks:
                for r in range(16):
                    e(f"v_sub_f32 {self.S(pb, blk, r)}, {self.S(pb, blk, r)}, v{d}")
            e(f"v_mul_f32 v{self.vL+gi}, v{self.vL+gi}, v{al}")
            for db in range(4):
                for r in range(16):
                    o = self.O(gi, db, r)
                    if gi == 0:
                        e(f"v_mul_f32 {o}, {o}, v{al}")
                    else:
                        e(f"v_accvgpr_read_b32 v{X+2}, {o}")
                        e(f"v_mul_f32 v{X+2}, v{X+2}, v{al}")
                        e(f"v_accvgpr_write_b32 {o}, v{X+2}")
            for blk in blks:
                self.softmax_plain([self.S(nb, blk, r) for r in range(16)], nb, blk, self.vTS + blk, sub_reg=d)
        e("s_nop 1")
        e(f"s_branch L_back{q}")

    def store_out(self, src):
        e = self.e
        base = self.vS
        for db in range(4):
            for jj in range(2):
                b = base + 8 * db + 4 * jj
                for k in range(4):
                    r = 8 * jj + 2 * k
                    e(f"v_cvt_pk_bf16_f32 v{b+k}, {src(db, r)}, {src(db, r+1)}")
        e("s_nop 1")
        for db in range(4):
            for jj in range(2):
                b = base + 8 * db + 4 * jj
                e(f"v_permlane32_swap_b32 v{b}, v{b+2}")
                e(f"v_permlane32_swap_b32 v{b+1}, v{b+3}")
        e("s_nop 1")
        for db in range(4):
            for jj in range(2):
                b = base + 8 * db + 4 * jj
                e(f"buffer_store_dwordx4 v[{b}:{b+3}], v{self.vQoff}, {self.srd(self.sO)}, s{self.sH0} offen offset:{64*db+32*jj}")

    def epilogue(self):
        e = self.e
        m = self.mode
        T = self.vT
        X = self.vX
        self.lab("L_epi")
        if m == 3:
            e("s_nop 7")
            self.cross_half("v_add_f32", self.vL, T, T + 1)
            e(f"v_rcp_f32 v{X}, v{self.vL}")
            e("s_nop 0")
            for i in range(0, 64, 2):
                b = self.vO0 + i
                e(f"v_pk_mul_f32 v[{b}:{b+1}], v[{b}:{b+1}], v[{X}:{X+1}] op_sel_hi:[1,0]")
            self.store_out(lambda db, r: self.O(0, db, r))
        else:
            e(f"s_lshl_b32 s6, s{self.sW}, 14")
            e(f"v_lshlrev_b32 v{X}, 4, v0")
            e(f"v_add_u32 v{X}, s6, v{X}")
            e(f"v_xor_b32 v{X+1}, 0x8000, v{X}")
            e(f"s_lshl_b32 s6, s{self.sW}, 9")
            e(f"s_add_u32 s6, s6, {self.LDS_T}")
            e(f"v_lshlrev_b32 v{X+2}, 3, v0")
            e(f"v_add_u32 v{X+2}, s6, v{X+2}")
            e(f"v_xor_b32 v{X+3}, 0x400, v{X+2}")
            e(f"v_mov_b32 v{X+4}, {self.NM(1, 0)}")
            e(f"v_mov_b32 v{X+5}, v{self.vL+1}")
            self.stamp(50)
            e("s_waitcnt vmcnt(0) lgkmcnt(0)")
            e("s_barrier")
            self.stamp(51)
            e(f"ds_write_b64 v{X+2}, v[{X+4}:{X+5}]")
            for i in range(16):
                b = self.aO1 + 4 * i
                e(f"ds_write_b128 v{X}, a[{b}:{b+3}] offset:{1024*i}")
            e("s_waitcnt lgkmcnt(0)")
            self.stamp(52)
            e("s_barrier")
            self.stamp(53)
            e(f"ds_read_b64 v[{X+4}:{X+5}], v{X+3}")
            R = self.vS + 32
            e(f"v_mov_b32 v{X+6}, {self.NM(0, 0)}")
            for i in range(16):
                b = R + 4 * i
                e(f"ds_read_b128 v[{b}:{b+3}], v{X+1} offset:{1024*i}")
            e("s_waitcnt lgkmcnt(15)")
            e("s_waitcnt lgkmcnt(15)")
            e(f"v_min_f32 v{X+7}, v{X+6}, v{X+4}")
            e(f"v_sub_f32 v{X+8}, v{X+7}, v{X+6}")
            e(f"v_sub_f32 v{X+10}, v{X+7}, v{X+4}")
            e(f"v_exp_f32 v{X+8}, v{X+8}")
            e(f"v_exp_f32 v{X+10}, v{X+10}")
            e("s_nop 0")
            e(f"v_mul_f32 v{X+12}, v{self.vL}, v{X+8}")
            e(f"v_fma_f32 v{X+12}, v{X+5}, v{X+10}, v{X+12}")
            self.cross_half("v_add_f32", X + 12, T, T + 1)
            e(f"v_rcp_f32 v{X+12}, v{X+12}")
            e("s_nop 0")
            e(f"v_mul_f32 v{X+8}, v{X+8}, v{X+12}")
            e(f"v_mul_f32 v{X+10}, v{X+10}, v{X+12}")
            for i in range(0, 64, 2):
                b = self.vO0 + i
                e(f"v_pk_mul_f32 v[{b}:{b+1}], v[{b}:{b+1}], v[{X+8}:{X+9}] op_sel_hi:[1,0]")
            for i in range(0, 64, 2):
                b = self.vO0 + i
                if i % 4 == 0:
                    e(f"s_waitcnt lgkmcnt({15 - i // 4})")
                e(f"v_pk_fma_f32 v[{b}:{b+1}], v[{R+i}:{R+i+1}], v[{X+10}:{X+11}], v[{b}:{b+1}] op_sel_hi:[1,0,1]")
            self.stamp(54)
            self.store_out(lambda db, r: self.O(0, db, r))
        if self.diag:
            self.stamp(55)
            e("s_waitcnt vmcnt(0) lgkmcnt(0)")
            e("s_memtime s[80:81]")
            e("s_memrealtime s[86:87]")
            e("s_waitcnt lgkmcnt(0)")
            e("v_writelane_b32 v254, s80, 1")
            e("v_writelane_b32 v255, s86, 1")
            e("s_lshl_b32 s6, s2, 2")
            e(f"s_add_u32 s6, s6, s{self.sW}")
            e("s_lshl_b32 s6, s6, 9")
            e("s_add_u32 s84, s84, s6")
            e("s_addc_u32 s85, s85, 0")
            e("s_and_b32 s85, s85, 0xffff")
            e("s_mov_b32 s86, 512")
            e("s_mov_b32 s87, 0x00020000")
            e("v_lshlrev_b32 v1, 3, v0")
            e("buffer_store_dwordx2 v[254:255], v1, s[84:87], 0 offen")
        if self.dbgtime:
            e("s_waitcnt vmcnt(0) lgkmcnt(0)")
            e("s_memtime s[82:83]")
            e("s_memrealtime s[88:89]")
            e("s_waitcnt lgkmcnt(0)")
            e("s_mov_b32 s84, s30")
            e("s_and_b32 s85, s31, 0xffff")
            e("s_not_b32 s90, s86")
            e("s_sub_u32 s91, s82, s80")
            e("s_sub_u32 s92, s88, s86")
            e("s_mov_b32 s86, 256")
            e("s_mov_b32 s87, 0x00020000")
            e("v_mov_b32 v1, 0")
            e("v_mov_b32 v2, s88")
            e("v_mov_b32 v3, s90")
            e("v_mov_b32 v4, s91")
            e("v_mov_b32 v5, s92")
            e("s_mov_b64 exec, 1")
            e("buffer_atomic_umax v2, v1, s[84:87], 0 offen")
            e("buffer_atomic_umax v3, v1, s[84:87], 0 offen offset:4")
            e("buffer_atomic_umax v4, v1, s[84:87], 0 offen offset:8")
            e("buffer_atomic_umax v5, v1, s[84:87], 0 offen offset:12")
        self.lab("L_end")
        e("s_endpgm")

    def build(self):
        k = NAME + "_kernel"
        self.prologue()
        pro = list(self.out)
        self.out.append(".p2align 6")
        for _ in range(self.align_pad):
            self.e("s_nop 0")
        its = []
        for q in range(4):
            n0 = len(self.out)
            self.iteration(q)
            its.append(self.out[n0:])
        n0 = len(self.out)
        self.epilogue()
        epi = self.out[n0:]
        rares = []
        for q in range(4):
            n0 = len(self.out)
            self.rare(q)
            rares.append(self.out[n0:])
        errs = []

        def upto_exit(lines):
            idx = [i for i, l in enumerate(lines) if "L_epi" in l][0]
            return lines[: idx + 1]

        errs += check(pro + its[3] + its[0] + its[1] + its[2] + its[3] + its[0], "main")
        errs += check(its[2] + upto_exit(its[3]) + epi, "exit")
        for q in range(4):
            errs += check(its[q] + rares[q] + its[(q + 1) & 3], f"rare{q}")
        for x in errs:
            print("HAZARD", x, file=sys.stderr)
        text = HEADER + f"; @launch grid=(256,1,1) block=(256,1,1) lds={self.LDS_BYTES}\n"
        text += '.amdgcn_target "amdgcn-amd-amdhsa--gfx950"\n.text\n'
        text += f".globl {k}\n.p2align 8\n.type {k},@function\n{k}:\n"
        text += "\n".join(self.out) + "\n"
        text += f""".section .rodata,"a"
.p2align 6
.amdhsa_kernel {k}
  .amdhsa_next_free_vgpr 512
  .amdhsa_next_free_sgpr 96
  .amdhsa_accum_offset 256
  .amdhsa_group_segment_fixed_size 0
  .amdhsa_kernarg_size 72
  .amdhsa_user_sgpr_count 2
  .amdhsa_user_sgpr_kernarg_segment_ptr 1
  .amdhsa_system_sgpr_workgroup_id_x 1
.end_amdhsa_kernel
"""
        return text, errs


if __name__ == "__main__":
    import argparse
    ap = argparse.ArgumentParser()
    ap.add_argument("-o", default=f"cdna_kernels/{NAME}.s")
    ap.add_argument("--mode", type=int, default=1)
    ap.add_argument("--nt", action="store_true")
    ap.add_argument("--exp_end", type=int, default=28)
    ap.add_argument("--pad", type=int, default=0)
    ap.add_argument("--dma", default=None)
    ap.add_argument("--diag", action="store_true")
    ap.add_argument("--dbgtime", action="store_true")
    ap.add_argument("--nomfma", action="store_true")
    ap.add_argument("--nodma", action="store_true")
    a = ap.parse_args()
    dg = [int(x) for x in a.dma.split(",")] if a.dma else None
    g = Gen(mode=a.mode, nt=a.nt, exp_end=a.exp_end, align_pad=a.pad, dma_gaps=dg, diag=a.diag, nomfma=a.nomfma, nodma=a.nodma, dbgtime=a.dbgtime)
    text, errs = g.build()
    open(a.o, "w").write(text)
    print("wrote", a.o, len(text), "bytes;", len(errs), "hazard reports")
```

```python
import math
import struct
import sys

from hazard import check

NAME = "standalone__tree_speculative_verify_tree_attention_over_candidate_token_tree__sampling"

HEADER = """; Kernarg layout for this problem (72 bytes, ptrs only, base s[0:1]):
; grid=ceil(out_elems/256), lds=0). Harness parses it; keep it on one line.
"""


def f32hex(x):
    return "0x%08x" % struct.unpack("<I", struct.pack("<f", x))[0]


class Gen:
    def __init__(self, mode=1, nt=False, dma_gaps=None, exp_end=28, align_pad=0, swap_order=False,
                 kread_gaps=None, vread_gaps=None, diag=False, nomfma=False, nodma=False, dbgtime=False, twice=0):
        self.twice = twice
        self.dbgtime = dbgtime
        self.diag = diag
        self.nomfma = nomfma
        self.nodma = nodma
        self.mode = mode
        self.nt = nt
        self.exp_end = exp_end
        self.align_pad = align_pad
        self.swap_order = swap_order
        self.dma_gaps = dma_gaps or [8, 9, 10, 11, 12, 13, 14, 15]
        self.kread_gaps = kread_gaps
        self.vread_gaps = vread_gaps
        self.out = []
        self.vKrd = 2
        self.vVrd = 10
        self.vKdma = 14
        self.vVdma = 18
        self.vQoff = 19
        self.vL = 20
        self.vTS = 22
        self.vT = 24
        self.vS = 32
        self.vNM = 96
        self.vP = 128
        self.vO0 = 160
        self.vX = 224
        self.aO1 = 0
        self.aQ = 64
        self.aK = 128
        self.aV = 192
        self.sK, self.sV, self.sQ, self.sKT, self.sVT, self.sM, self.sO = 36, 40, 44, 48, 52, 56, 60
        self.sKoff, self.sVoff, self.sKdst, self.sVdst, self.sCnt, self.sThr, self.sC = 64, 65, 66, 67, 68, 69, 70
        self.sH0, self.sH1, self.sW = 71, 72, 3
        self.LDS_K, self.LDS_V, self.LDS_T = 0, 65536, 131072
        self.LDS_BYTES = 147456

    def e(self, s):
        self.out.append("    " + s)

    def stamp(self, lane):
        if self.diag:
            self.e("s_memtime s[80:81]")
            self.e("s_waitcnt lgkmcnt(0)")
            self.e(f"v_writelane_b32 v254, s80, {lane}")

    def lab(self, s):
        self.out.append(s + ":")

    def S(self, buf, blk, r=None):
        b = self.vS + 32 * buf + 16 * blk
        return f"v[{b}:{b+15}]" if r is None else f"v{b+r}"

    def NM(self, blk, r=None):
        if self.mode == 3:
            blk = 0
        b = self.vNM + 16 * blk
        return f"v[{b}:{b+15}]" if r is None else f"v{b+r}"

    def P(self, buf, blk, u=None, r=None):
        b = self.vP + 16 * buf + 8 * blk
        if r is not None:
            return f"v{b+r}"
        return f"v[{b+4*u}:{b+4*u+3}]"

    def O(self, sub, db, r=None):
        if sub == 0:
            b = self.vO0 + 16 * db
            return f"v[{b}:{b+15}]" if r is None else f"v{b+r}"
        b = self.aO1 + 16 * db
        return f"a[{b}:{b+15}]" if r is None else f"a{b+r}"

    def Q(self, sub, s):
        b = self.aQ + 32 * sub + 4 * s
        return f"a[{b}:{b+3}]"

    def Kf(self, kb, s):
        b = self.aK + 32 * kb + 4 * s
        return f"a[{b}:{b+3}]"

    def Vf(self, kb, u, db, e=None):
        b = self.aV + 32 * kb + 16 * u + 4 * db
        if e is None:
            return f"a[{b}:{b+3}]"
        return f"a[{b+2*e}:{b+2*e+1}]"

    def srd(self, s):
        return f"s[{s}:{s+3}]"

    def dma(self, vreg, srd, soff, j):
        nt = " nt" if self.nt else ""
        return f"buffer_load_dwordx4 v{vreg}, {self.srd(srd)}, s{soff} offen offset:{1024*j}{nt} lds"

    def dma_group_k(self, srd, soff, m0expr):
        return [m0expr] + [self.dma(self.vKdma + j, srd, soff, j) for j in range(4)]

    def dma_group_v(self, srd, soff, m0expr):
        return [m0expr] + [self.dma(self.vVdma, srd, soff, j) for j in range(4)]

    def kreads(self, slot):
        out = []
        nkb = 1 if self.mode == 1 else 2
        for kb in range(nkb):
            for s in range(8):
                out.append(f"ds_read_b128 {self.Kf(kb, s)}, v{self.vKrd+s} offset:{kb*32768 + slot*8192}")
        return out

    def vreads(self, slot):
        out = []
        nkb = 1 if self.mode == 1 else 2
        for kb in range(nkb):
            for u in range(2):
                for db in range(4):
                    for e in range(2):
                        out.append(f"ds_read_b64_tr_b16 {self.Vf(kb, u, db, e)}, v{self.vVrd+db} "
                                   f"offset:{kb*32768 + slot*8192 + 4096*u + 2048*e}")
        return out

    def qk_mfmas(self, sbuf, cinit=None):
        out = []
        for blk in range(2):
            for s in range(8):
                a = self.Kf(0 if self.mode == 1 else blk, s)
                b = self.Q(blk if self.mode == 1 else 0, s)
                c = (cinit if cinit is not None else self.NM(blk)) if s == 0 else self.S(sbuf, blk)
                out.append(f"v_mfma_f32_32x32x16_bf16 {self.S(sbuf, blk)}, {a}, {b}, {c}")
        return out

    def pv_mfmas(self, pbuf):
        out = []
        if self.mode == 1:
            for blk in range(2):
                for u in range(2):
                    for db in range(4):
                        o = self.O(blk, db)
                        out.append(f"v_mfma_f32_32x32x16_bf16 {o}, {self.Vf(0, u, db)}, {self.P(pbuf, blk, u)}, {o}")
        else:
            for blk in range(2):
                for u in range(2):
                    for db in range(4):
                        o = self.O(0, db)
                        out.append(f"v_mfma_f32_32x32x16_bf16 {o}, {self.Vf(blk, u, db)}, {self.P(pbuf, blk, u)}, {o}")
        return out

    def cross_half(self, op, x, t0, t1):
        self.e(f"v_mov_b32 v{t0}, v{x}")
        self.e(f"v_mov_b32 v{t1}, v{x}")
        self.e("s_nop 1")
        self.e(f"v_permlane32_swap_b32 v{t0}, v{t1}")
        self.e("s_nop 1")
        self.e(f"{op} v{x}, v{t0}, v{t1}")

    def maxchain(self, dst, regs, first=True):
        regs = list(regs)
        if first:
            self.e(f"v_max3_f32 v{dst}, {regs[0]}, {regs[1]}, {regs[2]}")
            regs = regs[3:]
        while len(regs) >= 2:
            self.e(f"v_max3_f32 v{dst}, v{dst}, {regs[0]}, {regs[1]}")
            regs = regs[2:]
        if regs:
            self.e(f"v_max_f32 v{dst}, v{dst}, {regs[0]}")

    def softmax_plain(self, srcs, pbuf, blk, ts, sub_reg=None):
        T = self.vT
        for i in range(8):
            t0, t1 = T + (2 * i) % 8, T + (2 * i + 1) % 8
            if sub_reg is not None:
                self.e(f"v_sub_f32 v{t0}, {srcs[2*i]}, v{sub_reg}")
                self.e(f"v_sub_f32 v{t1}, {srcs[2*i+1]}, v{sub_reg}")
                self.e(f"v_exp_f32 v{t0}, v{t0}")
                self.e(f"v_exp_f32 v{t1}, v{t1}")
            else:
                self.e(f"v_exp_f32 v{t0}, {srcs[2*i]}")
                self.e(f"v_exp_f32 v{t1}, {srcs[2*i+1]}")
            self.e("s_nop 0")
            if i == 0:
                self.e(f"v_add_f32 v{ts}, v{t0}, v{t1}")
            else:
                self.e(f"v_add_f32 v{ts}, v{ts}, v{t0}")
                self.e(f"v_add_f32 v{ts}, v{ts}, v{t1}")
            self.e(f"v_cvt_pk_bf16_f32 {self.P(pbuf, blk, r=i)}, v{t0}, v{t1}")

    def prologue(self):
        e = self.e
        m = self.mode
        T = self.vT
        e("s_cmp_ge_u32 s2, 256")
        e("s_cbranch_scc1 L_end")
        if self.twice:
            e("s_mov_b32 s94, 0")
            e("v_mov_b32 v252, v0")
            self.lab("L_start")
        e("s_load_dwordx16 s[16:31], s[0:1], 0")
        if self.dbgtime:
            e("s_memtime s[80:81]")
            e("s_memrealtime s[86:87]")
        if self.diag:
            e("s_load_dwordx2 s[84:85], s[0:1], 64")
            e("s_memtime s[80:81]")
            e("s_memrealtime s[86:87]")
            e("s_mov_b32 s90, 2")
            e("v_mov_b32 v254, 0")
            e("v_mov_b32 v255, 0")
        e("v_lshrrev_b32 v1, 6, v0")
        e("v_and_b32 v0, 63, v0")
        e(f"v_readfirstlane_b32 s{self.sW}, v1")
        e("s_and_b32 s6, s2, 7")
        e("s_lshr_b32 s7, s2, 3")
        e("s_and_b32 s5, s7, 1")
        e("s_lshr_b32 s7, s7, 1")
        e("s_lshl_b32 s7, s7, 3")
        e("s_or_b32 s4, s7, s6")
        e(f"v_and_b32 v{T}, 31, v0")
        e(f"v_lshrrev_b32 v{T+1}, 5, v0")
        e(f"v_lshlrev_b32 v{T+2}, 8, v{T}")
        e(f"v_lshl_or_b32 v{self.vQoff}, v{T+1}, 4, v{T+2}")
        e(f"v_and_b32 v{T+3}, 15, v0")
        e(f"v_xor_b32 v{T+4}, v{T+1}, v{T+3}")
        e(f"v_lshl_or_b32 v{self.vKrd}, v{T+4}, 4, v{T+2}")
        e(f"s_lshr_b32 s8, s{self.sW}, 1")
        e(f"s_and_b32 s9, s{self.sW}, 1")
        e("s_lshl_b32 s10, s8, 15")
        if m == 1:
            e(f"v_add_u32 v{self.vKrd}, s10, v{self.vKrd}")
        for s in range(1, 8):
            e(f"v_xor_b32 v{self.vKrd+s}, {s << 5}, v{self.vKrd}")
        e(f"v_bfe_u32 v{T+4}, v0, 2, 2")
        e(f"v_lshl_add_u32 v{T+5}, v{T+1}, 2, v{T+4}")
        e(f"v_lshlrev_b32 v{T+5}, 8, v{T+5}")
        e(f"v_lshl_or_b32 v{T+5}, v{T+4}, 6, v{T+5}")
        e(f"v_bfe_u32 v{T+6}, v0, 4, 1")
        e(f"v_lshl_or_b32 v{T+5}, v{T+6}, 5, v{T+5}")
        e(f"v_and_b32 v{T+6}, 3, v0")
        e(f"v_lshl_or_b32 v{T+5}, v{T+6}, 3, v{T+5}")
        e(f"v_add_u32 v{self.vVrd}, {self.LDS_V}, v{T+5}")
        if m == 1:
            e(f"v_add_u32 v{self.vVrd}, s10, v{self.vVrd}")
        for db in range(1, 4):
            e(f"v_xor_b32 v{self.vVrd+db}, {db << 6}, v{self.vVrd}")
        e(f"v_lshrrev_b32 v{T+4}, 4, v0")
        e(f"v_xor_b32 v{T+5}, v{T+3}, v{T+4}")
        e(f"v_lshlrev_b32 v{T+6}, 8, v{T+4}")
        e(f"v_lshl_or_b32 v{self.vKdma}, v{T+5}, 4, v{T+6}")
        for j in range(1, 4):
            e(f"v_xor_b32 v{self.vKdma+j}, {j << 6}, v{self.vKdma}")
        e(f"v_lshlrev_b32 v{T+5}, 2, v{T+4}")
        e(f"v_xor_b32 v{T+5}, v{T+3}, v{T+5}")
        e(f"v_lshl_or_b32 v{self.vVdma}, v{T+5}, 4, v{T+6}")
        e(f"v_lshlrev_b32 v{T+7}, 6, v{T}")
        e(f"v_lshl_or_b32 v{T+7}, v{T+1}, 3, v{T+7}")
        e("s_lshl_b32 s11, s9, 12")
        e(f"s_add_u32 s{self.sKdst}, s10, s11")
        e(f"s_add_u32 s{self.sVdst}, s{self.sKdst}, {self.LDS_V}")
        e(f"s_lshl_b32 s{self.sKoff}, s{self.sW}, 12")
        e(f"s_mov_b32 s{self.sVoff}, s{self.sKoff}")
        e(f"s_mov_b32 s{self.sThr}, {f32hex(2.0**14)}")
        e(f"s_mov_b32 s{self.sC}, {f32hex(128**-0.5 * math.log2(math.e))}")
        e(f"s_mov_b32 s{self.sCnt}, 0")
        if m == 1:
            e("s_lshl_b32 s12, s9, 1")
            e("s_add_u32 s13, s12, s8")
            e(f"s_lshl_b32 s{self.sH0}, s13, 13")
            e("s_xor_b32 s13, s13, 1")
            e(f"s_lshl_b32 s{self.sH1}, s13, 13")
        else:
            e(f"s_lshl_b32 s{self.sH0}, s{self.sW}, 13")
        e("s_lshl_b32 s6, s4, 19")
        e("s_lshl_b32 s7, s4, 16")
        e("s_lshl_b32 s12, s5, 15")
        e("s_add_u32 s7, s7, s12")
        e("s_lshl_b32 s12, s4, 13")
        e("s_lshr_b32 s13, s4, 2")
        e("s_lshl_b32 s13, s13, 11")
        e("s_waitcnt lgkmcnt(0)")
        if self.diag:
            e("v_writelane_b32 v254, s80, 0")
            e("v_writelane_b32 v255, s86, 0")

        def mk(srd, ptr, off, size):
            e(f"s_add_u32 s{srd}, s{ptr}, s{off}")
            e(f"s_addc_u32 s{srd+1}, s{ptr+1}, 0")
            e(f"s_and_b32 s{srd+1}, s{srd+1}, 0xffff")
            e(f"s_mov_b32 s{srd+2}, {size}")
            e(f"s_mov_b32 s{srd+3}, 0x00020000")

        self.stamp(40)
        mk(self.sQ, 16, 7, 32768)
        nsub = 2 if m == 1 else 1
        for sub in range(nsub):
            for s in range(8):
                b = self.vS + 32 * sub + 4 * s
                e(f"buffer_load_dwordx4 v[{b}:{b+3}], v{self.vQoff}, {self.srd(self.sQ)}, "
                  f"s{self.sH0 if sub == 0 else self.sH1} offen offset:{32*s}")
        mk(self.sM, 26, 13, 2048)
        for a in range(4):
            b = self.vX + 2 * a
            e(f"buffer_load_dwordx2 v[{b}:{b+1}], v{T+7}, {self.srd(self.sM)}, 0 offen offset:{16*a}")
        self.stamp(41)
        mk(self.sKT, 22, 12, 8192)
        mk(self.sK, 18, 6, 524288)
        mk(self.sVT, 24, 12, 8192)
        mk(self.sV, 20, 6, 524288)
        mk(self.sO, 28, 7, 32768)

        def grp(lst):
            e(lst[0])
            e("s_nop 0")
            for x in lst[1:]:
                e(x)

        grp(self.dma_group_k(self.sKT, self.sKoff, f"s_add_u32 m0, s{self.sKoff}, {self.LDS_T}"))
        grp(self.dma_group_k(self.sK, self.sKoff, f"s_add_u32 m0, s{self.sKdst}, 0"))
        e(f"s_add_u32 s{self.sKoff}, s{self.sKoff}, 16384")
        grp(self.dma_group_v(self.sVT, 11, f"s_add_u32 m0, s{self.sVdst}, {3*8192}"))
        for i in range(3):
            grp(self.dma_group_k(self.sK, self.sKoff, f"s_add_u32 m0, s{self.sKdst}, {(i+1)*8192}"))
            e(f"s_add_u32 s{self.sKoff}, s{self.sKoff}, 16384")
            grp(self.dma_group_v(self.sV, self.sVoff, f"s_add_u32 m0, s{self.sVdst}, {i*8192}"))
            e(f"s_add_u32 s{self.sVoff}, s{self.sVoff}, 16384")
        self.stamp(42)
        for r in range(64):
            e(f"v_mov_b32 v{self.vO0+r}, 0")
        if m == 1:
            for r in range(64):
                e(f"v_accvgpr_write_b32 a{self.aO1+r}, 0")
        for r in range(8):
            e(f"v_mov_b32 {self.P(1, 1, r=r)}, 0")
        e(f"v_mov_b32 v{self.vL}, 0")
        e(f"v_mov_b32 v{self.vL+1}, 0")
        e(f"v_mov_b32 v{self.vTS+1}, 0")
        self.stamp(43)
        e("s_waitcnt vmcnt(40)")
        self.stamp(44)
        for i in range(32 * nsub):
            src = self.vS + i
            t0, t1 = T + (2 * i) % 6, T + (2 * i + 1) % 6
            e(f"v_lshlrev_b32 v{t0}, 16, v{src}")
            e(f"v_and_b32 v{t1}, 0xffff0000, v{src}")
            e(f"v_mul_f32 v{t0}, s{self.sC}, v{t0}")
            e(f"v_mul_f32 v{t1}, s{self.sC}, v{t1}")
            e(f"v_cvt_pk_bf16_f32 v{t0}, v{t0}, v{t1}")
            e(f"v_accvgpr_write_b32 a{self.aQ+i}, v{t0}")
        self.stamp(45)
        e("s_waitcnt vmcnt(36)")
        e(f"s_mov_b32 s12, {f32hex(-1e9)}")
        e(f"s_mov_b32 s13, {f32hex(math.log2(math.e))}")
        for a in range(4):
            for dd in range(2):
                src = self.vX + 2 * a + dd
                r0 = 4 * a + 2 * dd
                d0, d1 = self.vNM + r0, self.vNM + r0 + 1
                e(f"v_lshlrev_b32 v{d0}, 16, v{src}")
                e(f"v_and_b32 v{d1}, 0xffff0000, v{src}")
                for d in (d0, d1):
                    e(f"v_sub_f32 v{d}, 1.0, v{d}")
                    e(f"v_mul_f32 v{d}, s12, v{d}")
                    e(f"v_mul_f32 v{d}, s13, v{d}")
        for s in range(8):
            if m == 1:
                e(f"v_subrev_u32 v{self.vX+s}, s10, v{self.vKrd+s}")
                e(f"v_add_u32 v{self.vX+s}, {self.LDS_T}, v{self.vX+s}")
            else:
                e(f"v_add_u32 v{self.vX+s}, {self.LDS_T}, v{self.vKrd+s}")
        self.stamp(46)
        e("s_waitcnt vmcnt(24)")
        self.stamp(47)
        e("s_barrier")
        self.stamp(48)
        for s in range(8):
            b = self.aV + 4 * s
            e(f"ds_read_b128 a[{b}:{b+3}], v{self.vX+s}")
        for x in self.kreads(0):
            e(x)
        e(f"s_waitcnt lgkmcnt({8 if m == 1 else 15})")
        if m == 3:
            e("s_waitcnt lgkmcnt(0)")
        nm0 = f"v[{self.vNM}:{self.vNM+15}]"
        for s in range(8):
            b = self.aV + 4 * s
            c = nm0 if s == 0 else self.S(1, 0)
            e(f"v_mfma_f32_32x32x16_bf16 {self.S(1, 0)}, a[{b}:{b+3}], {self.Q(0, s)}, {c}")
        e("s_waitcnt lgkmcnt(0)")
        for x in self.qk_mfmas(0, cinit="0"):
            e(x)
        for x in self.vreads(3):
            e(x)
        e("s_nop 7")
        e("s_nop 7")
        self.stamp(49)
        mx0, mx1 = self.vX, self.vX + 1
        self.maxchain(mx0, [self.S(1, 0, r) for r in range(16)])
        self.maxchain(mx0, [self.S(0, 0, r) for r in range(16)], first=False)
        if m == 1:
            self.maxchain(mx1, [self.S(0, 1, r) for r in range(16)])
            self.cross_half("v_max_f32", mx0, T, T + 1)
            self.cross_half("v_max_f32", mx1, T, T + 1)
        else:
            self.maxchain(mx0, [self.S(0, 1, r) for r in range(16)], first=False)
            self.cross_half("v_max_f32", mx0, T, T + 1)
            mx1 = mx0
        for blk in range(2):
            mx = mx0 if blk == 0 else mx1
            if blk == 0 or m == 1:
                for r in range(16):
                    e(f"v_sub_f32 {self.NM(blk, r)}, 0, v{mx}")
            for r in range(16):
                e(f"v_sub_f32 {self.S(0, blk, r)}, {self.S(0, blk, r)}, v{mx}")
        self.softmax_plain([self.S(1, 0, r) for r in range(16)], 1, 0, self.vTS, sub_reg=mx0)
        e("s_branch L_it3")

    def iteration(self, q):
        e = self.e
        m = self.mode
        T = self.vT
        pb = q & 1
        nb = pb ^ 1
        fill = [[] for _ in range(32)]
        exp_gap = [min(31, (i * self.exp_end) // 32) for i in range(32)]
        pend = []
        seq = []
        for i in range(32):
            seq.append(("exp", i))
        for i in range(32):
            blk, r = i >> 4, i & 15
            t = T + (i % 8)
            fill[exp_gap[i]].append(f"v_exp_f32 v{t}, {self.S(nb, blk, r)}")
        for i in range(32):
            blk, r = i >> 4, i & 15
            t = T + (i % 8)
            tp = T + ((i - 1) % 8)
            g = min(31, exp_gap[i] + 1)
            ts = self.vTS + blk
            if r == 0:
                pass
            elif r == 1:
                fill[g].append(f"v_add_f32 v{ts}, v{tp}, v{t}")
            else:
                fill[g].append(f"v_add_f32 v{ts}, v{ts}, v{t}")
            if r & 1:
                fill[g].append(f"v_cvt_pk_bf16_f32 {self.P(nb, blk, r=r >> 1)}, v{tp}, v{t}")
        fill[0].insert(0, f"v_add_f32 v{self.vL}, v{self.vL}, v{self.vTS}")
        if m == 1:
            fill[1].insert(0, f"v_add_f32 v{self.vL+1}, v{self.vL+1}, v{self.vTS+1}")
        else:
            fill[1].insert(0, f"v_add_f32 v{self.vL}, v{self.vL}, v{self.vTS+1}")
        kr = self.kreads((q + 2) & 3)
        vr = self.vreads((q + 1) & 3)
        kg = self.kread_gaps or ([i for i in range(8)] if m == 1 else [i * 12 // 16 for i in range(16)])
        vg = self.vread_gaps or ([16 + i * 12 // 16 for i in range(16)] if m == 1 else [16 + i * 13 // 32 for i in range(32)])
        for x, g in zip(kr, kg):
            fill[g].append(x)
        for x, g in zip(vr, vg):
            fill[g].append(x)
        dk = self.dma_group_k(self.sK, self.sKoff, f"s_add_u32 m0, s{self.sKdst}, {((q+1)&3)*8192}")
        dv = self.dma_group_v(self.sV, self.sVoff, f"s_add_u32 m0, s{self.sVdst}, {(q&3)*8192}")
        dg = self.dma_gaps
        fill[dg[0]].insert(0, dk[0])
        for j in range(4):
            fill[dg[j]].append(dk[1 + j])
        fill[dg[3]].append(f"s_add_u32 s{self.sKoff}, s{self.sKoff}, 16384")
        fill[dg[4]].insert(0, dv[0])
        for j in range(4):
            fill[dg[4 + j]].append(dv[1 + j])
        fill[dg[7]].append(f"s_add_u32 s{self.sVoff}, s{self.sVoff}, 16384")
        fill[31].append(f"v_max_f32 v{T}, v{self.vTS}, v{self.vTS+1}")
        fill[31].append(f"v_cmp_lt_f32 vcc, s{self.sThr}, v{T}")

        mf = self.pv_mfmas(pb) + self.qk_mfmas(pb)
        self.lab(f"L_it{q}")
        if self.diag:
            e("s_memtime s[80:81]")
        e("s_waitcnt vmcnt(16) lgkmcnt(0)")
        e("s_barrier")
        if self.diag:
            e("s_memtime s[82:83]")
            e("v_cmp_eq_u32 s[92:93], s90, v0")
            e("v_mov_b32 v253, s80")
            e("s_nop 1")
            e("v_cndmask_b32 v254, v254, v253, s[92:93]")
        for i in range(32):
            if i == 16:
                if q == 3:
                    e(f"s_add_u32 s{self.sCnt}, s{self.sCnt}, 1")
                    e(f"s_cmp_eq_u32 s{self.sCnt}, 9")
                    e("s_cbranch_scc1 L_epi")
                e("s_waitcnt lgkmcnt(0)")
                if self.diag:
                    e("v_mov_b32 v253, s82")
                    e("v_cndmask_b32 v255, v255, v253, s[92:93]")
                    e("s_add_u32 s90, s90, 1")
            if not self.nomfma:
                e(mf[i])
            for x in fill[i]:
                if self.nodma and " lds" in x:
                    continue
                e(x)
        e(f"s_cbranch_vccnz L_rare{q}")
        self.lab(f"L_back{q}")
        if q == 3:
            e("s_branch L_it0")

    def rare(self, q):
        e = self.e
        m = self.mode
        T = self.vT
        pb = q & 1
        nb = pb ^ 1
        X = self.vX
        self.lab(f"L_rare{q}")
        e("s_nop 7")
        e("s_nop 7")
        groups = [[0], [1]] if m == 1 else [[0, 1]]
        for gi, blks in enumerate(groups):
            d, al = X, X + 1
            first = True
            for blk in blks:
                self.maxchain(d, [self.S(nb, blk, r) for r in range(16)], first=first)
                first = False
            self.cross_half("v_max_f32", d, T, T + 1)
            e(f"v_max_f32 v{d}, 0, v{d}")
            e(f"v_exp_f32 v{al}, -v{d}")
            for r in range(16):
                e(f"v_sub_f32 {self.NM(gi, r)}, {self.NM(gi, r)}, v{d}")
            for blk in blks:
                for r in range(16):
                    e(f"v_sub_f32 {self.S(pb, blk, r)}, {self.S(pb, blk, r)}, v{d}")
            e(f"v_mul_f32 v{self.vL+gi}, v{self.vL+gi}, v{al}")
            for db in range(4):
                for r in range(16):
                    o = self.O(gi, db, r)
                    if gi == 0:
                        e(f"v_mul_f32 {o}, {o}, v{al}")
                    else:
                        e(f"v_accvgpr_read_b32 v{X+2}, {o}")
                        e(f"v_mul_f32 v{X+2}, v{X+2}, v{al}")
                        e(f"v_accvgpr_write_b32 {o}, v{X+2}")
            for blk in blks:
                self.softmax_plain([self.S(nb, blk, r) for r in range(16)], nb, blk, self.vTS + blk, sub_reg=d)
        e("s_nop 1")
        e(f"s_branch L_back{q}")

    def store_out(self, src):
        e = self.e
        base = self.vS
        for db in range(4):
            for jj in range(2):
                b = base + 8 * db + 4 * jj
                for k in range(4):
                    r = 8 * jj + 2 * k
                    e(f"v_cvt_pk_bf16_f32 v{b+k}, {src(db, r)}, {src(db, r+1)}")
        e("s_nop 1")
        for db in range(4):
            for jj in range(2):
                b = base + 8 * db + 4 * jj
                e(f"v_permlane32_swap_b32 v{b}, v{b+2}")
                e(f"v_permlane32_swap_b32 v{b+1}, v{b+3}")
        e("s_nop 1")
        for db in range(4):
            for jj in range(2):
                b = base + 8 * db + 4 * jj
                e(f"buffer_store_dwordx4 v[{b}:{b+3}], v{self.vQoff}, {self.srd(self.sO)}, s{self.sH0} offen offset:{64*db+32*jj}")

    def epilogue(self):
        e = self.e
        m = self.mode
        T = self.vT
        X = self.vX
        self.lab("L_epi")
        if m == 3:
            e("s_nop 7")
            self.cross_half("v_add_f32", self.vL, T, T + 1)
            e(f"v_rcp_f32 v{X}, v{self.vL}")
            e("s_nop 0")
            for i in range(0, 64, 2):
                b = self.vO0 + i
                e(f"v_pk_mul_f32 v[{b}:{b+1}], v[{b}:{b+1}], v[{X}:{X+1}] op_sel_hi:[1,0]")
            self.store_out(lambda db, r: self.O(0, db, r))
        else:
            e(f"s_lshl_b32 s6, s{self.sW}, 14")
            e(f"v_lshlrev_b32 v{X}, 4, v0")
            e(f"v_add_u32 v{X}, s6, v{X}")
            e(f"v_xor_b32 v{X+1}, 0x8000, v{X}")
            e(f"s_lshl_b32 s6, s{self.sW}, 9")
            e(f"s_add_u32 s6, s6, {self.LDS_T}")
            e(f"v_lshlrev_b32 v{X+2}, 3, v0")
            e(f"v_add_u32 v{X+2}, s6, v{X+2}")
            e(f"v_xor_b32 v{X+3}, 0x400, v{X+2}")
            e(f"v_mov_b32 v{X+4}, {self.NM(1, 0)}")
            e(f"v_mov_b32 v{X+5}, v{self.vL+1}")
            self.stamp(50)
            e("s_waitcnt vmcnt(0) lgkmcnt(0)")
            e("s_barrier")
            self.stamp(51)
            e(f"ds_write_b64 v{X+2}, v[{X+4}:{X+5}]")
            for i in range(16):
                b = self.aO1 + 4 * i
                e(f"ds_write_b128 v{X}, a[{b}:{b+3}] offset:{1024*i}")
            e("s_waitcnt lgkmcnt(0)")
            self.stamp(52)
            e("s_barrier")
            self.stamp(53)
            e(f"ds_read_b64 v[{X+4}:{X+5}], v{X+3}")
            R = self.vS + 32
            e(f"v_mov_b32 v{X+6}, {self.NM(0, 0)}")
            for i in range(16):
                b = R + 4 * i
                e(f"ds_read_b128 v[{b}:{b+3}], v{X+1} offset:{1024*i}")
            e("s_waitcnt lgkmcnt(15)")
            e("s_waitcnt lgkmcnt(15)")
            e(f"v_min_f32 v{X+7}, v{X+6}, v{X+4}")
            e(f"v_sub_f32 v{X+8}, v{X+7}, v{X+6}")
            e(f"v_sub_f32 v{X+10}, v{X+7}, v{X+4}")
            e(f"v_exp_f32 v{X+8}, v{X+8}")
            e(f"v_exp_f32 v{X+10}, v{X+10}")
            e("s_nop 0")
            e(f"v_mul_f32 v{X+12}, v{self.vL}, v{X+8}")
            e(f"v_fma_f32 v{X+12}, v{X+5}, v{X+10}, v{X+12}")
            self.cross_half("v_add_f32", X + 12, T, T + 1)
            e(f"v_rcp_f32 v{X+12}, v{X+12}")
            e("s_nop 0")
            e(f"v_mul_f32 v{X+8}, v{X+8}, v{X+12}")
            e(f"v_mul_f32 v{X+10}, v{X+10}, v{X+12}")
            for i in range(0, 64, 2):
                b = self.vO0 + i
                e(f"v_pk_mul_f32 v[{b}:{b+1}], v[{b}:{b+1}], v[{X+8}:{X+9}] op_sel_hi:[1,0]")
            for i in range(0, 64, 2):
                b = self.vO0 + i
                if i % 4 == 0:
                    e(f"s_waitcnt lgkmcnt({15 - i // 4})")
                e(f"v_pk_fma_f32 v[{b}:{b+1}], v[{R+i}:{R+i+1}], v[{X+10}:{X+11}], v[{b}:{b+1}] op_sel_hi:[1,0,1]")
            self.stamp(54)
            self.store_out(lambda db, r: self.O(0, db, r))
        if self.diag:
            self.stamp(55)
            e("s_waitcnt vmcnt(0) lgkmcnt(0)")
            e("s_memtime s[80:81]")
            e("s_memrealtime s[86:87]")
            e("s_waitcnt lgkmcnt(0)")
            e("v_writelane_b32 v254, s80, 1")
            e("v_writelane_b32 v255, s86, 1")
            e("s_lshl_b32 s6, s2, 2")
            e(f"s_add_u32 s6, s6, s{self.sW}")
            e("s_lshl_b32 s6, s6, 9")
            e("s_add_u32 s84, s84, s6")
            e("s_addc_u32 s85, s85, 0")
            e("s_and_b32 s85, s85, 0xffff")
            e("s_mov_b32 s86, 512")
            e("s_mov_b32 s87, 0x00020000")
            e("v_lshlrev_b32 v1, 3, v0")
            e("buffer_store_dwordx2 v[254:255], v1, s[84:87], 0 offen")
        if self.dbgtime:
            e("s_waitcnt vmcnt(0) lgkmcnt(0)")
            e("s_memtime s[82:83]")
            e("s_memrealtime s[88:89]")
            e("s_waitcnt lgkmcnt(0)")
            e("s_mov_b32 s84, s30")
            e("s_and_b32 s85, s31, 0xffff")
            e("s_not_b32 s90, s86")
            e("s_sub_u32 s91, s82, s80")
            e("s_sub_u32 s92, s88, s86")
            e("s_mov_b32 s86, 256")
            e("s_mov_b32 s87, 0x00020000")
            e("v_mov_b32 v1, 0")
            e("v_mov_b32 v2, s88")
            e("v_mov_b32 v3, s90")
            e("v_mov_b32 v4, s91")
            e("v_mov_b32 v5, s92")
            e("s_mov_b64 exec, 1")
            e("buffer_atomic_umax v2, v1, s[84:87], 0 offen")
            e("buffer_atomic_umax v3, v1, s[84:87], 0 offen offset:4")
            e("buffer_atomic_umax v4, v1, s[84:87], 0 offen offset:8")
            e("buffer_atomic_umax v5, v1, s[84:87], 0 offen offset:12")
        if self.twice:
            e("s_waitcnt vmcnt(0) lgkmcnt(0)")
            e("s_barrier")
            e("s_add_u32 s94, s94, 1")
            e("v_mov_b32 v0, v252")
            e(f"s_cmp_le_u32 s94, {self.twice}")
            e("s_cbranch_scc1 L_start")
        self.lab("L_end")
        e("s_endpgm")

    def build(self):
        k = NAME + "_kernel"
        self.prologue()
        pro = list(self.out)
        self.out.append(".p2align 6")
        for _ in range(self.align_pad):
            self.e("s_nop 0")
        its = []
        for q in range(4):
            n0 = len(self.out)
            self.iteration(q)
            its.append(self.out[n0:])
        n0 = len(self.out)
        self.epilogue()
        epi = self.out[n0:]
        rares = []
        for q in range(4):
            n0 = len(self.out)
            self.rare(q)
            rares.append(self.out[n0:])
        errs = []

        def upto_exit(lines):
            idx = [i for i, l in enumerate(lines) if "L_epi" in l][0]
            return lines[: idx + 1]

        errs += check(pro + its[3] + its[0] + its[1] + its[2] + its[3] + its[0], "main")
        errs += check(its[2] + upto_exit(its[3]) + epi, "exit")
        for q in range(4):
            errs += check(its[q] + rares[q] + its[(q + 1) & 3], f"rare{q}")
        for x in errs:
            print("HAZARD", x, file=sys.stderr)
        text = HEADER + f"; @launch grid=(256,1,1) block=(256,1,1) lds={self.LDS_BYTES}\n"
        text += '.amdgcn_target "amdgcn-amd-amdhsa--gfx950"\n.text\n'
        text += f".globl {k}\n.p2align 8\n.type {k},@function\n{k}:\n"
        text += "\n".join(self.out) + "\n"
        text += f""".section .rodata,"a"
.p2align 6
.amdhsa_kernel {k}
  .amdhsa_next_free_vgpr 512
  .amdhsa_next_free_sgpr 96
  .amdhsa_accum_offset 256
  .amdhsa_group_segment_fixed_size 0
  .amdhsa_kernarg_size 72
  .amdhsa_user_sgpr_count 2
  .amdhsa_user_sgpr_kernarg_segment_ptr 1
  .amdhsa_system_sgpr_workgroup_id_x 1
.end_amdhsa_kernel
"""
        return text, errs


if __name__ == "__main__":
    import argparse
    ap = argparse.ArgumentParser()
    ap.add_argument("-o", default=f"cdna_kernels/{NAME}.s")
    ap.add_argument("--mode", type=int, default=1)
    ap.add_argument("--nt", action="store_true")
    ap.add_argument("--exp_end", type=int, default=28)
    ap.add_argument("--pad", type=int, default=0)
    ap.add_argument("--dma", default=None)
    ap.add_argument("--diag", action="store_true")
    ap.add_argument("--twice", type=int, default=0)
    ap.add_argument("--dbgtime", action="store_true")
    ap.add_argument("--nomfma", action="store_true")
    ap.add_argument("--nodma", action="store_true")
    a = ap.parse_args()
    dg = [int(x) for x in a.dma.split(",")] if a.dma else None
    g = Gen(mode=a.mode, nt=a.nt, exp_end=a.exp_end, align_pad=a.pad, dma_gaps=dg, diag=a.diag, nomfma=a.nomfma, nodma=a.nodma, dbgtime=a.dbgtime, twice=a.twice)
    text, errs = g.build()
    open(a.o, "w").write(text)
    print("wrote", a.o, len(text), "bytes;", len(errs), "hazard reports")
```

```python
import math
import struct
import sys

from hazard import check

NAME = "standalone__tree_speculative_verify_tree_attention_over_candidate_token_tree__sampling"

HEADER = """; Kernarg layout for this problem (72 bytes, ptrs only, base s[0:1]):
; grid=ceil(out_elems/256), lds=0). Harness parses it; keep it on one line.
"""


def f32hex(x):
    return "0x%08x" % struct.unpack("<I", struct.pack("<f", x))[0]


class Gen:
    def __init__(self, mode=1, nt=False, dma_gaps=None, exp_end=28, align_pad=0, swap_order=False,
                 kread_gaps=None, vread_gaps=None, diag=False, nomfma=False, nodma=False, dbgtime=False, twice=0, stream=False):
        self.stream = stream
        self.twice = twice
        self.dbgtime = dbgtime
        self.diag = diag
        self.nomfma = nomfma
        self.nodma = nodma
        self.mode = mode
        self.nt = nt
        self.exp_end = exp_end
        self.align_pad = align_pad
        self.swap_order = swap_order
        self.dma_gaps = dma_gaps or [8, 9, 10, 11, 12, 13, 14, 15]
        self.kread_gaps = kread_gaps
        self.vread_gaps = vread_gaps
        self.out = []
        self.vKrd = 2
        self.vVrd = 10
        self.vKdma = 14
        self.vVdma = 18
        self.vQoff = 19
        self.vL = 20
        self.vTS = 22
        self.vT = 24
        self.vS = 32
        self.vNM = 96
        self.vP = 128
        self.vO0 = 160
        self.vX = 224
        self.aO1 = 0
        self.aQ = 64
        self.aK = 128
        self.aV = 192
        self.sK, self.sV, self.sQ, self.sKT, self.sVT, self.sM, self.sO = 36, 40, 44, 48, 52, 56, 60
        self.sKoff, self.sVoff, self.sKdst, self.sVdst, self.sCnt, self.sThr, self.sC = 64, 65, 66, 67, 68, 69, 70
        self.sH0, self.sH1, self.sW = 71, 72, 3
        self.LDS_K, self.LDS_V, self.LDS_T = 0, 65536, 131072
        self.LDS_BYTES = 147456

    def e(self, s):
        self.out.append("    " + s)

    def stamp(self, lane):
        if self.diag:
            self.e("s_memtime s[80:81]")
            self.e("s_waitcnt lgkmcnt(0)")
            self.e(f"v_writelane_b32 v254, s80, {lane}")

    def lab(self, s):
        self.out.append(s + ":")

    def S(self, buf, blk, r=None):
        b = self.vS + 32 * buf + 16 * blk
        return f"v[{b}:{b+15}]" if r is None else f"v{b+r}"

    def NM(self, blk, r=None):
        if self.mode == 3:
            blk = 0
        b = self.vNM + 16 * blk
        return f"v[{b}:{b+15}]" if r is None else f"v{b+r}"

    def P(self, buf, blk, u=None, r=None):
        b = self.vP + 16 * buf + 8 * blk
        if r is not None:
            return f"v{b+r}"
        return f"v[{b+4*u}:{b+4*u+3}]"

    def O(self, sub, db, r=None):
        if sub == 0:
            b = self.vO0 + 16 * db
            return f"v[{b}:{b+15}]" if r is None else f"v{b+r}"
        b = self.aO1 + 16 * db
        return f"a[{b}:{b+15}]" if r is None else f"a{b+r}"

    def Q(self, sub, s):
        b = self.aQ + 32 * sub + 4 * s
        return f"a[{b}:{b+3}]"

    def Kf(self, kb, s):
        b = self.aK + 32 * kb + 4 * s
        return f"a[{b}:{b+3}]"

    def Vf(self, kb, u, db, e=None):
        b = self.aV + 32 * kb + 16 * u + 4 * db
        if e is None:
            return f"a[{b}:{b+3}]"
        return f"a[{b+2*e}:{b+2*e+1}]"

    def srd(self, s):
        return f"s[{s}:{s+3}]"

    def dma(self, vreg, srd, soff, j):
        nt = " nt" if self.nt else ""
        return f"buffer_load_dwordx4 v{vreg}, {self.srd(srd)}, s{soff} offen offset:{1024*j}{nt} lds"

    def dma_group_k(self, srd, soff, m0expr):
        return [m0expr] + [self.dma(self.vKdma + j, srd, soff, j) for j in range(4)]

    def dma_group_v(self, srd, soff, m0expr):
        return [m0expr] + [self.dma(self.vVdma, srd, soff, j) for j in range(4)]

    def kreads(self, slot):
        out = []
        nkb = 1 if self.mode == 1 else 2
        for kb in range(nkb):
            for s in range(8):
                out.append(f"ds_read_b128 {self.Kf(kb, s)}, v{self.vKrd+s} offset:{kb*32768 + slot*8192}")
        return out

    def vreads(self, slot):
        out = []
        nkb = 1 if self.mode == 1 else 2
        for kb in range(nkb):
            for u in range(2):
                for db in range(4):
                    for e in range(2):
                        out.append(f"ds_read_b64_tr_b16 {self.Vf(kb, u, db, e)}, v{self.vVrd+db} "
                                   f"offset:{kb*32768 + slot*8192 + 4096*u + 2048*e}")
        return out

    def qk_mfmas(self, sbuf, cinit=None):
        out = []
        for blk in range(2):
            for s in range(8):
                a = self.Kf(0 if self.mode == 1 else blk, s)
                b = self.Q(blk if self.mode == 1 else 0, s)
                c = (cinit if cinit is not None else self.NM(blk)) if s == 0 else self.S(sbuf, blk)
                out.append(f"v_mfma_f32_32x32x16_bf16 {self.S(sbuf, blk)}, {a}, {b}, {c}")
        return out

    def pv_mfmas(self, pbuf):
        out = []
        if self.mode == 1:
            for blk in range(2):
                for u in range(2):
                    for db in range(4):
                        o = self.O(blk, db)
                        out.append(f"v_mfma_f32_32x32x16_bf16 {o}, {self.Vf(0, u, db)}, {self.P(pbuf, blk, u)}, {o}")
        else:
            for blk in range(2):
                for u in range(2):
                    for db in range(4):
                        o = self.O(0, db)
                        out.append(f"v_mfma_f32_32x32x16_bf16 {o}, {self.Vf(blk, u, db)}, {self.P(pbuf, blk, u)}, {o}")
        return out

    def cross_half(self, op, x, t0, t1):
        self.e(f"v_mov_b32 v{t0}, v{x}")
        self.e(f"v_mov_b32 v{t1}, v{x}")
        self.e("s_nop 1")
        self.e(f"v_permlane32_swap_b32 v{t0}, v{t1}")
        self.e("s_nop 1")
        self.e(f"{op} v{x}, v{t0}, v{t1}")

    def maxchain(self, dst, regs, first=True):
        regs = list(regs)
        if first:
            self.e(f"v_max3_f32 v{dst}, {regs[0]}, {regs[1]}, {regs[2]}")
            regs = regs[3:]
        while len(regs) >= 2:
            self.e(f"v_max3_f32 v{dst}, v{dst}, {regs[0]}, {regs[1]}")
            regs = regs[2:]
        if regs:
            self.e(f"v_max_f32 v{dst}, v{dst}, {regs[0]}")

    def softmax_plain(self, srcs, pbuf, blk, ts, sub_reg=None):
        T = self.vT
        for i in range(8):
            t0, t1 = T + (2 * i) % 8, T + (2 * i + 1) % 8
            if sub_reg is not None:
                self.e(f"v_sub_f32 v{t0}, {srcs[2*i]}, v{sub_reg}")
                self.e(f"v_sub_f32 v{t1}, {srcs[2*i+1]}, v{sub_reg}")
                self.e(f"v_exp_f32 v{t0}, v{t0}")
                self.e(f"v_exp_f32 v{t1}, v{t1}")
            else:
                self.e(f"v_exp_f32 v{t0}, {srcs[2*i]}")
                self.e(f"v_exp_f32 v{t1}, {srcs[2*i+1]}")
            self.e("s_nop 0")
            if i == 0:
                self.e(f"v_add_f32 v{ts}, v{t0}, v{t1}")
            else:
                self.e(f"v_add_f32 v{ts}, v{ts}, v{t0}")
                self.e(f"v_add_f32 v{ts}, v{ts}, v{t1}")
            self.e(f"v_cvt_pk_bf16_f32 {self.P(pbuf, blk, r=i)}, v{t0}, v{t1}")

    def prologue(self):
        e = self.e
        m = self.mode
        T = self.vT
        e("s_cmp_ge_u32 s2, 256")
        e("s_cbranch_scc1 L_end")
        if self.twice:
            e("s_mov_b32 s94, 0")
            e("v_mov_b32 v252, v0")
            self.lab("L_start")
        e("s_load_dwordx16 s[16:31], s[0:1], 0")
        if self.dbgtime:
            e("s_memtime s[80:81]")
            e("s_memrealtime s[86:87]")
        if self.diag:
            e("s_load_dwordx2 s[84:85], s[0:1], 64")
            e("s_memtime s[80:81]")
            e("s_memrealtime s[86:87]")
            e("s_mov_b32 s90, 2")
            e("v_mov_b32 v254, 0")
            e("v_mov_b32 v255, 0")
        e("v_lshrrev_b32 v1, 6, v0")
        e("v_and_b32 v0, 63, v0")
        e(f"v_readfirstlane_b32 s{self.sW}, v1")
        e("s_and_b32 s6, s2, 7")
        e("s_lshr_b32 s7, s2, 3")
        e("s_and_b32 s5, s7, 1")
        e("s_lshr_b32 s7, s7, 1")
        e("s_lshl_b32 s7, s7, 3")
        e("s_or_b32 s4, s7, s6")
        e(f"v_and_b32 v{T}, 31, v0")
        e(f"v_lshrrev_b32 v{T+1}, 5, v0")
        e(f"v_lshlrev_b32 v{T+2}, 8, v{T}")
        e(f"v_lshl_or_b32 v{self.vQoff}, v{T+1}, 4, v{T+2}")
        e(f"v_and_b32 v{T+3}, 15, v0")
        e(f"v_xor_b32 v{T+4}, v{T+1}, v{T+3}")
        e(f"v_lshl_or_b32 v{self.vKrd}, v{T+4}, 4, v{T+2}")
        e(f"s_lshr_b32 s8, s{self.sW}, 1")
        e(f"s_and_b32 s9, s{self.sW}, 1")
        e("s_lshl_b32 s10, s8, 15")
        if m == 1:
            e(f"v_add_u32 v{self.vKrd}, s10, v{self.vKrd}")
        for s in range(1, 8):
            e(f"v_xor_b32 v{self.vKrd+s}, {s << 5}, v{self.vKrd}")
        e(f"v_bfe_u32 v{T+4}, v0, 2, 2")
        e(f"v_lshl_add_u32 v{T+5}, v{T+1}, 2, v{T+4}")
        e(f"v_lshlrev_b32 v{T+5}, 8, v{T+5}")
        e(f"v_lshl_or_b32 v{T+5}, v{T+4}, 6, v{T+5}")
        e(f"v_bfe_u32 v{T+6}, v0, 4, 1")
        e(f"v_lshl_or_b32 v{T+5}, v{T+6}, 5, v{T+5}")
        e(f"v_and_b32 v{T+6}, 3, v0")
        e(f"v_lshl_or_b32 v{T+5}, v{T+6}, 3, v{T+5}")
        e(f"v_add_u32 v{self.vVrd}, {self.LDS_V}, v{T+5}")
        if m == 1:
            e(f"v_add_u32 v{self.vVrd}, s10, v{self.vVrd}")
        for db in range(1, 4):
            e(f"v_xor_b32 v{self.vVrd+db}, {db << 6}, v{self.vVrd}")
        e(f"v_lshrrev_b32 v{T+4}, 4, v0")
        e(f"v_xor_b32 v{T+5}, v{T+3}, v{T+4}")
        e(f"v_lshlrev_b32 v{T+6}, 8, v{T+4}")
        e(f"v_lshl_or_b32 v{self.vKdma}, v{T+5}, 4, v{T+6}")
        for j in range(1, 4):
            e(f"v_xor_b32 v{self.vKdma+j}, {j << 6}, v{self.vKdma}")
        e(f"v_lshlrev_b32 v{T+5}, 2, v{T+4}")
        e(f"v_xor_b32 v{T+5}, v{T+3}, v{T+5}")
        e(f"v_lshl_or_b32 v{self.vVdma}, v{T+5}, 4, v{T+6}")
        e(f"v_lshlrev_b32 v{T+7}, 6, v{T}")
        e(f"v_lshl_or_b32 v{T+7}, v{T+1}, 3, v{T+7}")
        e("s_lshl_b32 s11, s9, 12")
        e(f"s_add_u32 s{self.sKdst}, s10, s11")
        e(f"s_add_u32 s{self.sVdst}, s{self.sKdst}, {self.LDS_V}")
        e(f"s_lshl_b32 s{self.sKoff}, s{self.sW}, 12")
        e(f"s_mov_b32 s{self.sVoff}, s{self.sKoff}")
        e(f"s_mov_b32 s{self.sThr}, {f32hex(2.0**14)}")
        e(f"s_mov_b32 s{self.sC}, {f32hex(128**-0.5 * math.log2(math.e))}")
        e(f"s_mov_b32 s{self.sCnt}, 0")
        if m == 1:
            e("s_lshl_b32 s12, s9, 1")
            e("s_add_u32 s13, s12, s8")
            e(f"s_lshl_b32 s{self.sH0}, s13, 13")
            e("s_xor_b32 s13, s13, 1")
            e(f"s_lshl_b32 s{self.sH1}, s13, 13")
        else:
            e(f"s_lshl_b32 s{self.sH0}, s{self.sW}, 13")
        e("s_lshl_b32 s6, s4, 19")
        e("s_lshl_b32 s7, s4, 16")
        e("s_lshl_b32 s12, s5, 15")
        e("s_add_u32 s7, s7, s12")
        e("s_lshl_b32 s12, s4, 13")
        e("s_lshr_b32 s13, s4, 2")
        e("s_lshl_b32 s13, s13, 11")
        e("s_waitcnt lgkmcnt(0)")
        if self.diag:
            e("v_writelane_b32 v254, s80, 0")
            e("v_writelane_b32 v255, s86, 0")

        def mk(srd, ptr, off, size):
            e(f"s_add_u32 s{srd}, s{ptr}, s{off}")
            e(f"s_addc_u32 s{srd+1}, s{ptr+1}, 0")
            e(f"s_and_b32 s{srd+1}, s{srd+1}, 0xffff")
            e(f"s_mov_b32 s{srd+2}, {size}")
            e(f"s_mov_b32 s{srd+3}, 0x00020000")

        self.stamp(40)
        mk(self.sQ, 16, 7, 32768)
        nsub = 2 if m == 1 else 1
        for sub in range(nsub):
            for s in range(8):
                b = self.vS + 32 * sub + 4 * s
                e(f"buffer_load_dwordx4 v[{b}:{b+3}], v{self.vQoff}, {self.srd(self.sQ)}, "
                  f"s{self.sH0 if sub == 0 else self.sH1} offen offset:{32*s}")
        mk(self.sM, 26, 13, 2048)
        for a in range(4):
            b = self.vX + 2 * a
            e(f"buffer_load_dwordx2 v[{b}:{b+1}], v{T+7}, {self.srd(self.sM)}, 0 offen offset:{16*a}")
        self.stamp(41)
        mk(self.sKT, 22, 12, 8192)
        mk(self.sK, 18, 6, 524288)
        mk(self.sVT, 24, 12, 8192)
        mk(self.sV, 20, 6, 524288)
        mk(self.sO, 28, 7, 32768)

        def grp(lst):
            e(lst[0])
            e("s_nop 0")
            for x in lst[1:]:
                e(x)

        grp(self.dma_group_k(self.sKT, self.sKoff, f"s_add_u32 m0, s{self.sKoff}, {self.LDS_T}"))
        grp(self.dma_group_k(self.sK, self.sKoff, f"s_add_u32 m0, s{self.sKdst}, 0"))
        e(f"s_add_u32 s{self.sKoff}, s{self.sKoff}, 16384")
        grp(self.dma_group_v(self.sVT, 11, f"s_add_u32 m0, s{self.sVdst}, {3*8192}"))
        for i in range(3):
            grp(self.dma_group_k(self.sK, self.sKoff, f"s_add_u32 m0, s{self.sKdst}, {(i+1)*8192}"))
            e(f"s_add_u32 s{self.sKoff}, s{self.sKoff}, 16384")
            grp(self.dma_group_v(self.sV, self.sVoff, f"s_add_u32 m0, s{self.sVdst}, {i*8192}"))
            e(f"s_add_u32 s{self.sVoff}, s{self.sVoff}, 16384")
        self.stamp(42)
        for r in range(64):
            e(f"v_mov_b32 v{self.vO0+r}, 0")
        if m == 1:
            for r in range(64):
                e(f"v_accvgpr_write_b32 a{self.aO1+r}, 0")
        for r in range(8):
            e(f"v_mov_b32 {self.P(1, 1, r=r)}, 0")
        e(f"v_mov_b32 v{self.vL}, 0")
        e(f"v_mov_b32 v{self.vL+1}, 0")
        e(f"v_mov_b32 v{self.vTS+1}, 0")
        self.stamp(43)
        e("s_waitcnt vmcnt(40)")
        self.stamp(44)
        for i in range(32 * nsub):
            src = self.vS + i
            t0, t1 = T + (2 * i) % 6, T + (2 * i + 1) % 6
            e(f"v_lshlrev_b32 v{t0}, 16, v{src}")
            e(f"v_and_b32 v{t1}, 0xffff0000, v{src}")
            e(f"v_mul_f32 v{t0}, s{self.sC}, v{t0}")
            e(f"v_mul_f32 v{t1}, s{self.sC}, v{t1}")
            e(f"v_cvt_pk_bf16_f32 v{t0}, v{t0}, v{t1}")
            e(f"v_accvgpr_write_b32 a{self.aQ+i}, v{t0}")
        self.stamp(45)
        e("s_waitcnt vmcnt(36)")
        e(f"s_mov_b32 s12, {f32hex(-1e9)}")
        e(f"s_mov_b32 s13, {f32hex(math.log2(math.e))}")
        for a in range(4):
            for dd in range(2):
                src = self.vX + 2 * a + dd
                r0 = 4 * a + 2 * dd
                d0, d1 = self.vNM + r0, self.vNM + r0 + 1
                e(f"v_lshlrev_b32 v{d0}, 16, v{src}")
                e(f"v_and_b32 v{d1}, 0xffff0000, v{src}")
                for d in (d0, d1):
                    e(f"v_sub_f32 v{d}, 1.0, v{d}")
                    e(f"v_mul_f32 v{d}, s12, v{d}")
                    e(f"v_mul_f32 v{d}, s13, v{d}")
        for s in range(8):
            if m == 1:
                e(f"v_subrev_u32 v{self.vX+s}, s10, v{self.vKrd+s}")
                e(f"v_add_u32 v{self.vX+s}, {self.LDS_T}, v{self.vX+s}")
            else:
                e(f"v_add_u32 v{self.vX+s}, {self.LDS_T}, v{self.vKrd+s}")
        self.stamp(46)
        e("s_waitcnt vmcnt(24)")
        self.stamp(47)
        e("s_barrier")
        self.stamp(48)
        for s in range(8):
            b = self.aV + 4 * s
            e(f"ds_read_b128 a[{b}:{b+3}], v{self.vX+s}")
        for x in self.kreads(0):
            e(x)
        e(f"s_waitcnt lgkmcnt({8 if m == 1 else 15})")
        if m == 3:
            e("s_waitcnt lgkmcnt(0)")
        nm0 = f"v[{self.vNM}:{self.vNM+15}]"
        for s in range(8):
            b = self.aV + 4 * s
            c = nm0 if s == 0 else self.S(1, 0)
            e(f"v_mfma_f32_32x32x16_bf16 {self.S(1, 0)}, a[{b}:{b+3}], {self.Q(0, s)}, {c}")
        e("s_waitcnt lgkmcnt(0)")
        for x in self.qk_mfmas(0, cinit="0"):
            e(x)
        for x in self.vreads(3):
            e(x)
        e("s_nop 7")
        e("s_nop 7")
        self.stamp(49)
        mx0, mx1 = self.vX, self.vX + 1
        self.maxchain(mx0, [self.S(1, 0, r) for r in range(16)])
        self.maxchain(mx0, [self.S(0, 0, r) for r in range(16)], first=False)
        if m == 1:
            self.maxchain(mx1, [self.S(0, 1, r) for r in range(16)])
            self.cross_half("v_max_f32", mx0, T, T + 1)
            self.cross_half("v_max_f32", mx1, T, T + 1)
        else:
            self.maxchain(mx0, [self.S(0, 1, r) for r in range(16)], first=False)
            self.cross_half("v_max_f32", mx0, T, T + 1)
            mx1 = mx0
        for blk in range(2):
            mx = mx0 if blk == 0 else mx1
            if blk == 0 or m == 1:
                for r in range(16):
                    e(f"v_sub_f32 {self.NM(blk, r)}, 0, v{mx}")
            for r in range(16):
                e(f"v_sub_f32 {self.S(0, blk, r)}, {self.S(0, blk, r)}, v{mx}")
        self.softmax_plain([self.S(1, 0, r) for r in range(16)], 1, 0, self.vTS, sub_reg=mx0)
        e("s_branch L_it3")

    def iteration(self, q):
        e = self.e
        m = self.mode
        T = self.vT
        pb = q & 1
        nb = pb ^ 1
        fill = [[] for _ in range(32)]
        exp_gap = [min(31, (i * self.exp_end) // 32) for i in range(32)]
        pend = []
        seq = []
        for i in range(32):
            seq.append(("exp", i))
        for i in range(32):
            blk, r = i >> 4, i & 15
            t = T + (i % 8)
            fill[exp_gap[i]].append(f"v_exp_f32 v{t}, {self.S(nb, blk, r)}")
        for i in range(32):
            blk, r = i >> 4, i & 15
            t = T + (i % 8)
            tp = T + ((i - 1) % 8)
            g = min(31, exp_gap[i] + 1)
            ts = self.vTS + blk
            if r == 0:
                pass
            elif r == 1:
                fill[g].append(f"v_add_f32 v{ts}, v{tp}, v{t}")
            else:
                fill[g].append(f"v_add_f32 v{ts}, v{ts}, v{t}")
            if r & 1:
                fill[g].append(f"v_cvt_pk_bf16_f32 {self.P(nb, blk, r=r >> 1)}, v{tp}, v{t}")
        fill[0].insert(0, f"v_add_f32 v{self.vL}, v{self.vL}, v{self.vTS}")
        if m == 1:
            fill[1].insert(0, f"v_add_f32 v{self.vL+1}, v{self.vL+1}, v{self.vTS+1}")
        else:
            fill[1].insert(0, f"v_add_f32 v{self.vL}, v{self.vL}, v{self.vTS+1}")
        kr = self.kreads((q + 2) & 3)
        vr = self.vreads((q + 1) & 3)
        kg = self.kread_gaps or ([i for i in range(8)] if m == 1 else [i * 12 // 16 for i in range(16)])
        vg = self.vread_gaps or ([16 + i * 12 // 16 for i in range(16)] if m == 1 else [16 + i * 13 // 32 for i in range(32)])
        for x, g in zip(kr, kg):
            fill[g].append(x)
        for x, g in zip(vr, vg):
            fill[g].append(x)
        dk = self.dma_group_k(self.sK, self.sKoff, f"s_add_u32 m0, s{self.sKdst}, {((q+1)&3)*8192}")
        dv = self.dma_group_v(self.sV, self.sVoff, f"s_add_u32 m0, s{self.sVdst}, {(q&3)*8192}")
        dg = self.dma_gaps
        fill[dg[0]].insert(0, dk[0])
        for j in range(4):
            fill[dg[j]].append(dk[1 + j])
        fill[dg[3]].append(f"s_add_u32 s{self.sKoff}, s{self.sKoff}, 16384")
        fill[dg[4]].insert(0, dv[0])
        for j in range(4):
            fill[dg[4 + j]].append(dv[1 + j])
        fill[dg[7]].append(f"s_add_u32 s{self.sVoff}, s{self.sVoff}, 16384")
        fill[31].append(f"v_max_f32 v{T}, v{self.vTS}, v{self.vTS+1}")
        fill[31].append(f"v_cmp_lt_f32 vcc, s{self.sThr}, v{T}")

        mf = self.pv_mfmas(pb) + self.qk_mfmas(pb)
        self.lab(f"L_it{q}")
        if self.diag:
            e("s_memtime s[80:81]")
        e("s_waitcnt vmcnt(16) lgkmcnt(0)")
        e("s_barrier")
        if self.diag:
            e("s_memtime s[82:83]")
            e("v_cmp_eq_u32 s[92:93], s90, v0")
            e("v_mov_b32 v253, s80")
            e("s_nop 1")
            e("v_cndmask_b32 v254, v254, v253, s[92:93]")
        for i in range(32):
            if i == 16:
                if q == 3:
                    e(f"s_add_u32 s{self.sCnt}, s{self.sCnt}, 1")
                    e(f"s_cmp_eq_u32 s{self.sCnt}, 9")
                    e("s_cbranch_scc1 L_epi")
                e("s_waitcnt lgkmcnt(0)")
                if self.diag:
                    e("v_mov_b32 v253, s82")
                    e("v_cndmask_b32 v255, v255, v253, s[92:93]")
                    e("s_add_u32 s90, s90, 1")
            if not (self.nomfma or self.stream):
                e(mf[i])
            for x in fill[i]:
                if self.nodma and " lds" in x:
                    continue
                if self.stream and not (" lds" in x or x.startswith("s_")):
                    continue
                if self.stream and "m0" in x:
                    e(x)
                    x = "s_nop 0"
                e(x)
        if not self.stream:
            e(f"s_cbranch_vccnz L_rare{q}")
        self.lab(f"L_back{q}")
        if q == 3:
            e("s_branch L_it0")

    def rare(self, q):
        e = self.e
        m = self.mode
        T = self.vT
        pb = q & 1
        nb = pb ^ 1
        X = self.vX
        self.lab(f"L_rare{q}")
        e("s_nop 7")
        e("s_nop 7")
        groups = [[0], [1]] if m == 1 else [[0, 1]]
        for gi, blks in enumerate(groups):
            d, al = X, X + 1
            first = True
            for blk in blks:
                self.maxchain(d, [self.S(nb, blk, r) for r in range(16)], first=first)
                first = False
            self.cross_half("v_max_f32", d, T, T + 1)
            e(f"v_max_f32 v{d}, 0, v{d}")
            e(f"v_exp_f32 v{al}, -v{d}")
            for r in range(16):
                e(f"v_sub_f32 {self.NM(gi, r)}, {self.NM(gi, r)}, v{d}")
            for blk in blks:
                for r in range(16):
                    e(f"v_sub_f32 {self.S(pb, blk, r)}, {self.S(pb, blk, r)}, v{d}")
            e(f"v_mul_f32 v{self.vL+gi}, v{self.vL+gi}, v{al}")
            for db in range(4):
                for r in range(16):
                    o = self.O(gi, db, r)
                    if gi == 0:
                        e(f"v_mul_f32 {o}, {o}, v{al}")
                    else:
                        e(f"v_accvgpr_read_b32 v{X+2}, {o}")
                        e(f"v_mul_f32 v{X+2}, v{X+2}, v{al}")
                        e(f"v_accvgpr_write_b32 {o}, v{X+2}")
            for blk in blks:
                self.softmax_plain([self.S(nb, blk, r) for r in range(16)], nb, blk, self.vTS + blk, sub_reg=d)
        e("s_nop 1")
        e(f"s_branch L_back{q}")

    def store_out(self, src):
        e = self.e
        base = self.vS
        for db in range(4):
            for jj in range(2):
                b = base + 8 * db + 4 * jj
                for k in range(4):
                    r = 8 * jj + 2 * k
                    e(f"v_cvt_pk_bf16_f32 v{b+k}, {src(db, r)}, {src(db, r+1)}")
        e("s_nop 1")
        for db in range(4):
            for jj in range(2):
                b = base + 8 * db + 4 * jj
                e(f"v_permlane32_swap_b32 v{b}, v{b+2}")
                e(f"v_permlane32_swap_b32 v{b+1}, v{b+3}")
        e("s_nop 1")
        for db in range(4):
            for jj in range(2):
                b = base + 8 * db + 4 * jj
                e(f"buffer_store_dwordx4 v[{b}:{b+3}], v{self.vQoff}, {self.srd(self.sO)}, s{self.sH0} offen offset:{64*db+32*jj}")

    def epilogue(self):
        e = self.e
        m = self.mode
        T = self.vT
        X = self.vX
        self.lab("L_epi")
        if m == 3:
            e("s_nop 7")
            self.cross_half("v_add_f32", self.vL, T, T + 1)
            e(f"v_rcp_f32 v{X}, v{self.vL}")
            e("s_nop 0")
            for i in range(0, 64, 2):
                b = self.vO0 + i
                e(f"v_pk_mul_f32 v[{b}:{b+1}], v[{b}:{b+1}], v[{X}:{X+1}] op_sel_hi:[1,0]")
            self.store_out(lambda db, r: self.O(0, db, r))
        else:
            e(f"s_lshl_b32 s6, s{self.sW}, 14")
            e(f"v_lshlrev_b32 v{X}, 4, v0")
            e(f"v_add_u32 v{X}, s6, v{X}")
            e(f"v_xor_b32 v{X+1}, 0x8000, v{X}")
            e(f"s_lshl_b32 s6, s{self.sW}, 9")
            e(f"s_add_u32 s6, s6, {self.LDS_T}")
            e(f"v_lshlrev_b32 v{X+2}, 3, v0")
            e(f"v_add_u32 v{X+2}, s6, v{X+2}")
            e(f"v_xor_b32 v{X+3}, 0x400, v{X+2}")
            e(f"v_mov_b32 v{X+4}, {self.NM(1, 0)}")
            e(f"v_mov_b32 v{X+5}, v{self.vL+1}")
            self.stamp(50)
            e("s_waitcnt vmcnt(0) lgkmcnt(0)")
            e("s_barrier")
            self.stamp(51)
            e(f"ds_write_b64 v{X+2}, v[{X+4}:{X+5}]")
            for i in range(16):
                b = self.aO1 + 4 * i
                e(f"ds_write_b128 v{X}, a[{b}:{b+3}] offset:{1024*i}")
            e("s_waitcnt lgkmcnt(0)")
            self.stamp(52)
            e("s_barrier")
            self.stamp(53)
            e(f"ds_read_b64 v[{X+4}:{X+5}], v{X+3}")
            R = self.vS + 32
            e(f"v_mov_b32 v{X+6}, {self.NM(0, 0)}")
            for i in range(16):
                b = R + 4 * i
                e(f"ds_read_b128 v[{b}:{b+3}], v{X+1} offset:{1024*i}")
            e("s_waitcnt lgkmcnt(15)")
            e("s_waitcnt lgkmcnt(15)")
            e(f"v_min_f32 v{X+7}, v{X+6}, v{X+4}")
            e(f"v_sub_f32 v{X+8}, v{X+7}, v{X+6}")
            e(f"v_sub_f32 v{X+10}, v{X+7}, v{X+4}")
            e(f"v_exp_f32 v{X+8}, v{X+8}")
            e(f"v_exp_f32 v{X+10}, v{X+10}")
            e("s_nop 0")
            e(f"v_mul_f32 v{X+12}, v{self.vL}, v{X+8}")
            e(f"v_fma_f32 v{X+12}, v{X+5}, v{X+10}, v{X+12}")
            self.cross_half("v_add_f32", X + 12, T, T + 1)
            e(f"v_rcp_f32 v{X+12}, v{X+12}")
            e("s_nop 0")
            e(f"v_mul_f32 v{X+8}, v{X+8}, v{X+12}")
            e(f"v_mul_f32 v{X+10}, v{X+10}, v{X+12}")
            for i in range(0, 64, 2):
                b = self.vO0 + i
                e(f"v_pk_mul_f32 v[{b}:{b+1}], v[{b}:{b+1}], v[{X+8}:{X+9}] op_sel_hi:[1,0]")
            for i in range(0, 64, 2):
                b = self.vO0 + i
                if i % 4 == 0:
                    e(f"s_waitcnt lgkmcnt({15 - i // 4})")
                e(f"v_pk_fma_f32 v[{b}:{b+1}], v[{R+i}:{R+i+1}], v[{X+10}:{X+11}], v[{b}:{b+1}] op_sel_hi:[1,0,1]")
            self.stamp(54)
            self.store_out(lambda db, r: self.O(0, db, r))
        if self.diag:
            self.stamp(55)
            e("s_waitcnt vmcnt(0) lgkmcnt(0)")
            e("s_memtime s[80:81]")
            e("s_memrealtime s[86:87]")
            e("s_waitcnt lgkmcnt(0)")
            e("v_writelane_b32 v254, s80, 1")
            e("v_writelane_b32 v255, s86, 1")
            e("s_lshl_b32 s6, s2, 2")
            e(f"s_add_u32 s6, s6, s{self.sW}")
            e("s_lshl_b32 s6, s6, 9")
            e("s_add_u32 s84, s84, s6")
            e("s_addc_u32 s85, s85, 0")
            e("s_and_b32 s85, s85, 0xffff")
            e("s_mov_b32 s86, 512")
            e("s_mov_b32 s87, 0x00020000")
            e("v_lshlrev_b32 v1, 3, v0")
            e("buffer_store_dwordx2 v[254:255], v1, s[84:87], 0 offen")
        if self.dbgtime:
            e("s_waitcnt vmcnt(0) lgkmcnt(0)")
            e("s_memtime s[82:83]")
            e("s_memrealtime s[88:89]")
            e("s_waitcnt lgkmcnt(0)")
            e("s_mov_b32 s84, s30")
            e("s_and_b32 s85, s31, 0xffff")
            e("s_not_b32 s90, s86")
            e("s_sub_u32 s91, s82, s80")
            e("s_sub_u32 s92, s88, s86")
            e("s_mov_b32 s86, 256")
            e("s_mov_b32 s87, 0x00020000")
            e("v_mov_b32 v1, 0")
            e("v_mov_b32 v2, s88")
            e("v_mov_b32 v3, s90")
            e("v_mov_b32 v4, s91")
            e("v_mov_b32 v5, s92")
            e("s_mov_b64 exec, 1")
            e("buffer_atomic_umax v2, v1, s[84:87], 0 offen")
            e("buffer_atomic_umax v3, v1, s[84:87], 0 offen offset:4")
            e("buffer_atomic_umax v4, v1, s[84:87], 0 offen offset:8")
            e("buffer_atomic_umax v5, v1, s[84:87], 0 offen offset:12")
        if self.twice:
            e("s_waitcnt vmcnt(0) lgkmcnt(0)")
            e("s_barrier")
            e("s_add_u32 s94, s94, 1")
            e("v_mov_b32 v0, v252")
            e(f"s_cmp_le_u32 s94, {self.twice}")
            e("s_cbranch_scc1 L_start")
        self.lab("L_end")
        e("s_endpgm")

    def build(self):
        k = NAME + "_kernel"
        self.prologue()
        pro = list(self.out)
        self.out.append(".p2align 6")
        for _ in range(self.align_pad):
            self.e("s_nop 0")
        its = []
        for q in range(4):
            n0 = len(self.out)
            self.iteration(q)
            its.append(self.out[n0:])
        n0 = len(self.out)
        self.epilogue()
        epi = self.out[n0:]
        rares = []
        for q in range(4):
            n0 = len(self.out)
            self.rare(q)
            rares.append(self.out[n0:])
        errs = []

        def upto_exit(lines):
            idx = [i for i, l in enumerate(lines) if "L_epi" in l][0]
            return lines[: idx + 1]

        errs += check(pro + its[3] + its[0] + its[1] + its[2] + its[3] + its[0], "main")
        errs += check(its[2] + upto_exit(its[3]) + epi, "exit")
        for q in range(4):
            errs += check(its[q] + rares[q] + its[(q + 1) & 3], f"rare{q}")
        for x in errs:
            print("HAZARD", x, file=sys.stderr)
        text = HEADER + f"; @launch grid=(256,1,1) block=(256,1,1) lds={self.LDS_BYTES}\n"
        text += '.amdgcn_target "amdgcn-amd-amdhsa--gfx950"\n.text\n'
        text += f".globl {k}\n.p2align 8\n.type {k},@function\n{k}:\n"
        text += "\n".join(self.out) + "\n"
        text += f""".section .rodata,"a"
.p2align 6
.amdhsa_kernel {k}
  .amdhsa_next_free_vgpr 512
  .amdhsa_next_free_sgpr 96
  .amdhsa_accum_offset 256
  .amdhsa_group_segment_fixed_size 0
  .amdhsa_kernarg_size 72
  .amdhsa_user_sgpr_count 2
  .amdhsa_user_sgpr_kernarg_segment_ptr 1
  .amdhsa_system_sgpr_workgroup_id_x 1
.end_amdhsa_kernel
"""
        return text, errs


if __name__ == "__main__":
    import argparse
    ap = argparse.ArgumentParser()
    ap.add_argument("-o", default=f"cdna_kernels/{NAME}.s")
    ap.add_argument("--mode", type=int, default=1)
    ap.add_argument("--nt", action="store_true")
    ap.add_argument("--exp_end", type=int, default=28)
    ap.add_argument("--pad", type=int, default=0)
    ap.add_argument("--dma", default=None)
    ap.add_argument("--diag", action="store_true")
    ap.add_argument("--stream", action="store_true")
    ap.add_argument("--twice", type=int, default=0)
    ap.add_argument("--dbgtime", action="store_true")
    ap.add_argument("--nomfma", action="store_true")
    ap.add_argument("--nodma", action="store_true")
    a = ap.parse_args()
    dg = [int(x) for x in a.dma.split(",")] if a.dma else None
    g = Gen(mode=a.mode, nt=a.nt, exp_end=a.exp_end, align_pad=a.pad, dma_gaps=dg, diag=a.diag, nomfma=a.nomfma, nodma=a.nodma, dbgtime=a.dbgtime, twice=a.twice, stream=a.stream)
    text, errs = g.build()
    open(a.o, "w").write(text)
    print("wrote", a.o, len(text), "bytes;", len(errs), "hazard reports")
```

```python
import re

REG = re.compile(r"\b([vas])\[(\d+):(\d+)\]|\b([vas])(\d+)\b|\b(vcc|m0|exec)\b")

TRANS = ("v_exp_f32", "v_log_f32", "v_rcp_f32", "v_rsq_f32", "v_sqrt_f32", "v_sin_f32", "v_cos_f32")


def regs_of(tok):
    out = []
    for m in REG.finditer(tok):
        if m.group(1):
            out += [(m.group(1), i) for i in range(int(m.group(2)), int(m.group(3)) + 1)]
        elif m.group(4):
            out.append((m.group(4), int(m.group(5))))
        else:
            out.append((m.group(6), 0))
    return out


def split_ops(s):
    ops, cur, depth = [], "", 0
    for ch in s:
        if ch == "[":
            depth += 1
        if ch == "]":
            depth -= 1
        if ch == "," and depth == 0:
            ops.append(cur.strip())
            cur = ""
        else:
            cur += ch
    if cur.strip():
        ops.append(cur.strip())
    return ops


class I:
    def __init__(self, text):
        self.text = text
        t = text.split(";")[0].strip()
        parts = t.split(None, 1)
        self.op = parts[0]
        rest = parts[1] if len(parts) > 1 else ""
        ops = split_ops(rest)
        self.ops = ops
        op = self.op
        self.cls = "other"
        self.w, self.r = [], []
        self.srcc = []
        self.srcab = []
        self.states = 1
        if op == "s_nop":
            self.states = int(ops[0], 0) + 1
            self.cls = "nop"
        elif op.startswith("v_mfma"):
            self.cls = "mfma"
            self.w = regs_of(ops[0])
            self.srcab = regs_of(ops[1]) + regs_of(ops[2])
            self.srcc = regs_of(ops[3].split()[0])
            self.r = self.srcab + self.srcc
        elif op.startswith("v_cmp"):
            self.cls = "valu"
            self.w = regs_of(ops[0])
            self.r = sum((regs_of(o) for o in ops[1:]), [])
        elif op.startswith("v_permlane"):
            self.cls = "permlane"
            self.w = regs_of(ops[0]) + regs_of(ops[1])
            self.r = list(self.w)
        elif op.startswith("v_readfirstlane") or op.startswith("v_readlane"):
            self.cls = "readlane"
            self.w = regs_of(ops[0])
            self.r = sum((regs_of(o) for o in ops[1:]), [])
        elif op.startswith("v_"):
            self.cls = "valu"
            self.w = regs_of(ops[0])
            srcs = ops[1:]
            self.r = sum((regs_of(o.split(" op_sel")[0]) for o in srcs), [])
            if op.startswith("v_fmac") or op.startswith("v_pk_fmac"):
                self.r += self.w
            if op.startswith("v_cndmask") and len(ops) == 3:
                self.r.append(("vcc", 0))
        elif op.startswith("ds_read"):
            self.cls = "dsr"
            self.w = regs_of(ops[0])
            self.r = regs_of(ops[1].split()[0])
        elif op.startswith("ds_write"):
            self.cls = "dsw"
            self.r = sum((regs_of(o.split()[0]) for o in ops), [])
        elif op.startswith("buffer_load"):
            self.cls = "vmem"
            if " lds" in t:
                self.r = sum((regs_of(o.split()[0]) for o in ops), []) + [("m0", 0)]
                self.cls = "dma"
            else:
                self.w = regs_of(ops[0])
                self.r = sum((regs_of(o.split()[0]) for o in ops[1:]), [])
        elif op.startswith("buffer_store") or op.startswith("global_store"):
            self.cls = "store"
            self.r = sum((regs_of(o.split()[0]) for o in ops), [])
            self.data = regs_of(ops[0]) if op.startswith("buffer") else regs_of(ops[1])
        elif op.startswith("s_"):
            self.cls = "salu"
            if op.startswith(("s_cmp", "s_cbranch", "s_branch", "s_waitcnt", "s_barrier", "s_endpgm", "s_setprio", "s_sleep")):
                self.r = sum((regs_of(o) for o in ops), [])
            else:
                self.w = regs_of(ops[0]) if ops else []
                self.r = sum((regs_of(o) for o in ops[1:]), [])
        self.trans = op.startswith(TRANS)
        self.isvalu = self.cls in ("valu", "permlane", "readlane")


def check(lines, name=""):
    ins = [I(l) for l in lines if l.strip() and not l.strip().endswith(":") and not l.strip().startswith((";", "."))]
    errs = []
    n = len(ins)
    for j, c in enumerate(ins):
        dist = 0
        for i in range(j - 1, max(-1, j - 30), -1):
            p = ins[i]
            need = 0
            why = ""
            pw, cr, cw = set(p.w), set(c.r), set(c.w)
            if p.isvalu and c.cls == "mfma" and pw & cr:
                need, why = max(need, 2), "valu->mfma"
            if p.cls == "mfma":
                p4 = "16x16" in p.op
                if c.cls == "mfma":
                    if pw & set(c.srcab):
                        need, why = max(need, 8 if p4 else 12), "mfma D->A/B"
                    if pw & set(c.srcc) and p.w != c.srcc:
                        need, why = max(need, 6 if p4 else 10), "mfma D->C partial"
                    if pw & cw and not (pw & set(c.srcc)):
                        need, why = max(need, 0), ""
                elif c.cls != "salu" and c.cls != "nop" and (pw & cr or pw & cw):
                    need, why = max(need, 8 if p4 else 12), "mfma D->valu/mem"
                if c.isvalu and set(p.srcc) & cw:
                    need, why = max(need, 3 if p4 else 7), "mfma C WAR"
            if p.trans and c.isvalu and not c.trans and pw & cr:
                need, why = max(need, 1), "trans->valu"
            if p.trans and c.cls == "mfma" and pw & cr:
                need, why = max(need, 2), "trans->mfma"
            if p.isvalu and c.cls == "permlane" and pw & cr:
                need, why = max(need, 2), "valu->permlane"
            if p.isvalu and c.cls == "readlane" and pw & cr:
                need, why = max(need, 1), "valu->readlane"
            sw = {x for x in pw if x[0] in ("s", "vcc")}
            if p.isvalu and sw:
                if c.isvalu and sw & cr:
                    need, why = max(need, 2), "valu sgpr->valu"
                if c.cls in ("vmem", "dma", "store") and sw & cr:
                    need, why = max(need, 5), "valu sgpr->vmem"
            if p.cls == "salu" and ("m0", 0) in pw and c.cls == "dma":
                need, why = max(need, 1), "m0->dma"
            if p.cls == "store" and ("x4" in p.op or "x3" in p.op) and set(p.data) & cw:
                need, why = max(need, 2 if c.isvalu else 1), "store data WAR"
            if dist < need:
                errs.append(f"{name}: [{why}] need {need} have {dist}: '{p.text.strip()}' -> '{c.text.strip()}'")
            dist += p.states
    return errs
```

```python
import math
import struct
import sys

from hazard import check

NAME = "standalone__tree_speculative_verify_tree_attention_over_candidate_token_tree__sampling"

HEADER = """; Kernarg layout for this problem (72 bytes, ptrs only, base s[0:1]):
;   offset  16: d_in[2] v_cache  shape=(32, 4, 2048, 128) dtype=bfloat16 strides=(2097152, 524288, 256, 2) contiguous=True
;   offset  32: d_in[4] v_tree  shape=(32, 4, 32, 128) dtype=bfloat16 strides=(32768, 8192, 256, 2) contiguous=True
; grid=ceil(out_elems/256), lds=0). Harness parses it; keep it on one line.
"""

MF = "v_mfma_f32_16x16x32_bf16"


def f32hex(x):
    return "0x%08x" % struct.unpack("<I", struct.pack("<f", x))[0]


class Gen:
    def __init__(self, nt=True, diag=0, dma_gaps=None, kread_gaps=None, vread_gaps=None, budget=8.5,
                 c_ds=4, c_dma=8, c_salu=4, first_burst=4, align_pad=0, thr_log2=14, q_start=0,
                 nodma=False, nods=False, novalu=False, nomfma=False):
        self.nt, self.diag = nt, diag
        self.dma_gaps = dma_gaps or [4, 12, 20, 28, 38, 46, 54, 61]
        self.kread_gaps = kread_gaps or [1, 3, 5, 7, 9, 11, 13, 15]
        self.vread_gaps = vread_gaps or [33 + (i * 24) // 16 for i in range(16)]
        self.budget, self.c_ds, self.c_dma, self.c_salu = budget, c_ds, c_dma, c_salu
        self.first_burst, self.align_pad, self.thr_log2 = first_burst, align_pad, thr_log2
        self.q_start = q_start
        self.nodma, self.nods, self.novalu, self.nomfma = nodma, nods, novalu, nomfma
        self.out = []
        self.vKrd = 2
        self.vVrd = 6
        self.vKdma = 14
        self.vVdma = 18
        self.vL = 20
        self.vT = 24
        self.vS = 32
        self.vNM = 96
        self.vTS = 112
        self.vP = 128
        self.vO0 = 160
        self.vX = 224
        self.vOne = 248
        self.aO1, self.aQ, self.aK, self.aV = 0, 64, 128, 192
        self.sK, self.sV, self.sQ, self.sKT, self.sVT, self.sM, self.sO = 36, 40, 44, 48, 52, 56, 60
        self.sKoff, self.sVoff, self.sKdst, self.sVdst, self.sCnt, self.sThr, self.sC = 64, 65, 66, 67, 68, 69, 70
        self.sH0, self.sH1, self.sW, self.sW4k = 71, 72, 3, 73
        self.sKs, self.sVs, self.sRamp = 32, 33, 34
        self.LDS_V, self.LDS_T = 65536, 131072
        self.LDS_BYTES = 147456

    def e(self, s):
        self.out.append("    " + s)

    def lab(self, s):
        self.out.append(s + ":")

    def stamp(self, lane):
        if self.diag == 1 or (self.diag and lane >= 62):
            self.e("s_memtime s[80:81]")
            self.e("s_waitcnt lgkmcnt(0)")
            self.e(f"v_writelane_b32 v254, s80, {lane}")

    def rstamp(self, lane):
        if self.diag:
            self.e("s_memrealtime s[80:81]")
            self.e("s_waitcnt lgkmcnt(0)")
            self.e(f"v_writelane_b32 v255, s80, {lane}")
            self.stamp(lane)

    @staticmethod
    def r4(f, b):
        return f"{f}[{b}:{b+3}]"

    def S(self, buf, qt, kt):
        return self.r4("v", self.vS + 32 * buf + 8 * qt + 4 * kt)

    def Se(self, buf, i):
        return f"v{self.vS + 32 * buf + i}"

    def NM(self, qt):
        return self.r4("v", self.vNM + 4 * qt)

    def TS(self, qt):
        return self.r4("v", self.vTS + 4 * qt)

    def P(self, buf, qt):
        return self.r4("v", self.vP + 16 * buf + 4 * qt)

    def Pe(self, buf, i):
        return f"v{self.vP + 16 * buf + i}"

    def O(self, qt, dt):
        if qt < 2:
            return self.r4("v", self.vO0 + 32 * qt + 4 * dt)
        return self.r4("a", self.aO1 + 32 * (qt - 2) + 4 * dt)

    def Q(self, qt, ds):
        return self.r4("a", self.aQ + 16 * qt + 4 * ds)

    def Kf(self, kt, ds):
        return self.r4("a", self.aK + 16 * kt + 4 * ds)

    def Vf(self, dt):
        return self.r4("a", self.aV + 4 * dt)

    def srd(self, s):
        return f"s[{s}:{s+3}]"

    def dma(self, vreg, srd, soff, j):
        nt = " nt" if self.nt else ""
        return f"buffer_load_dwordx4 v{vreg}, {self.srd(srd)}, s{soff} offen offset:{1024*j}{nt} lds"

    def kdmas(self, srd, soff):
        return [self.dma(self.vKdma + j, srd, soff, j) for j in range(4)]

    def vdmas(self, srd, soff):
        return [self.dma(self.vVdma + (j & 1), srd, soff, j) for j in range(4)]

    def run_group(self, which):
        if which == "K":
            return ([f"s_add_u32 m0, s{self.sKdst}, s{self.sKs}"], self.kdmas(self.sK, self.sKoff),
                    [f"s_add_u32 s{self.sKoff}, s{self.sKoff}, 16384",
                     f"s_add_u32 s{self.sKs}, s{self.sKs}, 0x2000",
                     f"s_and_b32 s{self.sKs}, s{self.sKs}, 0x6000"])
        return ([f"s_add_u32 m0, s{self.sVdst}, s{self.sVs}"], self.vdmas(self.sV, self.sVoff),
                [f"s_add_u32 s{self.sVoff}, s{self.sVoff}, 16384",
                 f"s_add_u32 s{self.sVs}, s{self.sVs}, 0x2000",
                 f"s_and_b32 s{self.sVs}, s{self.sVs}, 0x6000"])

    def kreads(self, slot):
        return [f"ds_read_b128 {self.Kf(kt, ds)}, v{self.vKrd+ds} offset:{slot*8192 + kt*4096}"
                for kt in range(2) for ds in range(4)]

    def vreads(self, slot):
        out = []
        for dt in range(8):
            for e_ in range(2):
                b = self.aV + 4 * dt + 2 * e_
                out.append(f"ds_read_b64_tr_b16 a[{b}:{b+1}], v{self.vVrd+dt} offset:{slot*8192 + 4096*e_}")
        return out

    def qk_mfmas(self, sbuf, cinit=None, qts=range(4)):
        out = []
        for qt in qts:
            for kt in range(2):
                for ds in range(4):
                    c = (cinit if cinit is not None else self.NM(qt)) if ds == 0 else self.S(sbuf, qt, kt)
                    out.append(f"{MF} {self.S(sbuf, qt, kt)}, {self.Kf(kt, ds)}, {self.Q(qt, ds)}, {c}")
        return out

    def pv(self, pbuf, qt, dt):
        o = self.O(qt, dt)
        return f"{MF} {o}, {self.Vf(dt)}, {self.P(pbuf, qt)}, {o}"

    def summ(self, pbuf, qt):
        return f"{MF} {self.TS(qt)}, {self.r4('v', self.vOne)}, {self.P(pbuf, qt)}, 0"

    def cross(self, op, x, t0, t1):
        for sw in ("v_permlane16_swap_b32", "v_permlane32_swap_b32"):
            self.e(f"v_mov_b32 v{t0}, v{x}")
            self.e(f"v_mov_b32 v{t1}, v{x}")
            self.e("s_nop 1")
            self.e(f"{sw} v{t0}, v{t1}")
            self.e("s_nop 1")
            self.e(f"{op} v{x}, v{t0}, v{t1}")

    def maxchain(self, dst, regs, first=True):
        regs = list(regs)
        out = []
        if first:
            out.append(f"v_max3_f32 v{dst}, {regs[0]}, {regs[1]}, {regs[2]}")
            regs = regs[3:]
        while len(regs) >= 2:
            out.append(f"v_max3_f32 v{dst}, v{dst}, {regs[0]}, {regs[1]}")
            regs = regs[2:]
        if regs:
            out.append(f"v_max_f32 v{dst}, v{dst}, {regs[0]}")
        return out

    def softmax_plain(self, sbuf, qt, pbuf, sub_reg):
        T = self.vT
        for i in range(8):
            self.e(f"v_sub_f32 v{T+i}, {self.Se(sbuf, 8*qt+i)}, v{sub_reg}")
        for i in range(8):
            self.e(f"v_exp_f32 v{T+i}, v{T+i}")
        self.e("s_nop 0")
        for i in range(4):
            self.e(f"v_cvt_pk_bf16_f32 {self.Pe(pbuf, 4*qt+i)}, v{T+2*i}, v{T+2*i+1}")

    def prologue(self):
        e = self.e
        T, X = self.vT, self.vX
        e("s_cmp_ge_u32 s2, 256")
        e("s_cbranch_scc1 L_end")
        e("s_load_dwordx16 s[16:31], s[0:1], 0")
        if self.diag:
            e("s_load_dwordx2 s[84:85], s[0:1], 64")
            e("s_memtime s[80:81]")
            e("s_memrealtime s[86:87]")
            e("s_mov_b32 s90, 2")
            e("v_mov_b32 v254, 0")
            e("v_mov_b32 v255, 0")
        e("v_lshrrev_b32 v1, 6, v0")
        e("v_and_b32 v0, 63, v0")
        e(f"v_readfirstlane_b32 s{self.sW}, v1")
        e("s_and_b32 s6, s2, 7")
        e("s_lshr_b32 s7, s2, 3")
        e("s_and_b32 s5, s7, 1")
        e("s_lshr_b32 s7, s7, 1")
        e("s_lshl_b32 s7, s7, 3")
        e("s_or_b32 s4, s7, s6")
        e(f"v_and_b32 v{T}, 15, v0")
        e(f"v_lshrrev_b32 v{T+1}, 4, v0")
        e(f"v_lshlrev_b32 v{X+16}, 4, v0")
        e(f"s_lshr_b32 s8, s{self.sW}, 1")
        e(f"s_and_b32 s9, s{self.sW}, 1")
        e("s_lshl_b32 s10, s8, 15")
        e("s_lshl_b32 s11, s9, 12")
        e(f"s_lshl_b32 s{self.sW4k}, s{self.sW}, 12")
        e("s_lshl_b32 s6, s4, 19")
        e("s_lshl_b32 s7, s4, 16")
        e("s_lshl_b32 s12, s5, 15")
        e("s_add_u32 s7, s7, s12")
        e("s_lshl_b32 s12, s4, 13")
        e("s_lshr_b32 s13, s4, 2")
        e("s_lshl_b32 s13, s13, 11")
        e(f"s_lshl_b32 s14, s{self.sW}, 13")
        e("s_add_u32 s15, s14, 4096")
        e(f"v_xor_b32 v{T+2}, v{T}, v{T+1}")
        e(f"v_lshlrev_b32 v{T+3}, 8, v{T+1}")
        e(f"v_lshl_or_b32 v{self.vKdma}, v{T+2}, 4, v{T+3}")
        for j in range(1, 4):
            e(f"v_xor_b32 v{self.vKdma+j}, {j << 6}, v{self.vKdma}")
        e(f"s_add_u32 s{self.sKdst}, s10, s11")
        e(f"s_add_u32 s{self.sVdst}, s{self.sKdst}, {self.LDS_V}")
        e(f"s_mov_b32 s{self.sKoff}, s{self.sW4k}")
        e(f"s_mov_b32 s{self.sVoff}, s{self.sW4k}")
        e("s_waitcnt lgkmcnt(0)")
        if self.diag:
            e("v_writelane_b32 v254, s80, 0")
            e("v_writelane_b32 v255, s86, 0")

        def mk(srd, ptr, off, size):
            e(f"s_add_u32 s{srd}, s{ptr}, s{off}")
            e(f"s_addc_u32 s{srd+1}, s{ptr+1}, 0")
            e(f"s_and_b32 s{srd+1}, s{srd+1}, 0xffff")
            e(f"s_mov_b32 s{srd+2}, {size}")
            e(f"s_mov_b32 s{srd+3}, 0x00020000")

        vm = [0]
        done = {}
        pend = []

        def add_group(tag, m0, dmas, post=()):
            for i, x in enumerate(dmas):
                pend.append((tag, [m0, "s_nop 0"] if i == 0 else [], x, list(post) if i == 3 else []))

        def tick(n=1):
            for _ in range(n):
                if not pend:
                    return
                tag, pre, x, post = pend.pop(0)
                for y in pre:
                    e(y)
                e(x)
                vm[0] += 1
                done[tag] = vm[0]
                for y in post:
                    e(y)

        def waitfor(tag, extra=""):
            assert not any(p[0] == tag for p in pend), tag
            e(f"s_waitcnt vmcnt({vm[0] - done[tag]}){extra}")

        self.stamp(40)
        mk(self.sQ, 16, 7, 32768)
        for j in range(8):
            bq = self.vS + 4 * j
            pend.append((f"Q{j}", [], f"buffer_load_dwordx4 v[{bq}:{bq+3}], v{X+16}, {self.srd(self.sQ)}, "
                         f"s{14 + j // 4} offen offset:{1024*(j%4)}", []))
        tick(8)
        mk(self.sK, 18, 6, 524288)
        add_group("K0", f"s_mov_b32 m0, s{self.sKdst}", self.kdmas(self.sK, self.sKoff),
                  [f"s_add_u32 s{self.sKoff}, s{self.sKoff}, 16384"])
        tick(self.first_burst)
        self.stamp(41)
        mk(self.sKT, 22, 12, 8192)
        mk(self.sM, 26, 13, 2048)
        mk(self.sVT, 24, 12, 8192)
        mk(self.sV, 20, 6, 524288)
        mk(self.sO, 28, 7, 32768)
        e(f"v_lshlrev_b32 v{T+4}, 1, v{T+1}")
        e(f"v_xor_b32 v{T+4}, v{T}, v{T+4}")
        e(f"v_lshl_or_b32 v{self.vVdma}, v{T+4}, 4, v{T+3}")
        e(f"v_xor_b32 v{self.vVdma+1}, 0x80, v{self.vVdma}")
        e(f"v_lshlrev_b32 v{X+17}, 6, v{T}")
        e(f"v_lshl_or_b32 v{X+17}, v{T+1}, 3, v{X+17}")
        add_group("TK", f"s_add_u32 m0, s{self.sW4k}, {self.LDS_T}", self.kdmas(self.sKT, self.sW4k))
        for qt in range(2):
            for kt in range(2):
                bq = X + 4 * qt + 2 * kt
                pend.append(("M", [], f"buffer_load_dwordx2 v[{bq}:{bq+1}], v{X+17}, {self.srd(self.sM)}, 0 offen "
                             f"offset:{1024*qt + 32*kt}", []))
        add_group("TV", f"s_add_u32 m0, s{self.sVdst}, {3*8192}", self.vdmas(self.sVT, 11))
        add_group("K1", f"s_add_u32 m0, s{self.sKdst}, 8192", self.kdmas(self.sK, self.sKoff),
                  [f"s_add_u32 s{self.sKoff}, s{self.sKoff}, 16384"])
        add_group("V0", f"s_mov_b32 m0, s{self.sVdst}", self.vdmas(self.sV, self.sVoff),
                  [f"s_add_u32 s{self.sVoff}, s{self.sVoff}, 16384"])
        e(f"v_lshlrev_b32 v{T+4}, 8, v{T}")
        e(f"v_lshl_or_b32 v{self.vKrd}, v{T+2}, 4, v{T+4}")
        e(f"v_add_u32 v{self.vKrd}, s10, v{self.vKrd}")
        for ds in range(1, 4):
            e(f"v_xor_b32 v{self.vKrd+ds}, {ds << 6}, v{self.vKrd}")
        e(f"v_lshrrev_b32 v{T+4}, 2, v0")
        e(f"v_and_b32 v{T+5}, 7, v{T+4}")
        e(f"v_lshlrev_b32 v{T+4}, 8, v{T+4}")
        e(f"v_lshl_or_b32 v{T+4}, v{T+5}, 5, v{T+4}")
        e(f"v_and_b32 v{T+5}, 3, v0")
        e(f"v_lshl_or_b32 v{T+4}, v{T+5}, 3, v{T+4}")
        e(f"s_add_u32 s14, s10, {self.LDS_V}")
        e(f"v_add_u32 v{self.vVrd}, s14, v{T+4}")
        for dt in range(1, 8):
            e(f"v_xor_b32 v{self.vVrd+dt}, {dt << 5}, v{self.vVrd}")
        e(f"s_mov_b32 s{self.sThr}, {f32hex(2.0**self.thr_log2)}")
        e(f"s_mov_b32 s{self.sCnt}, 0")
        e(f"s_mov_b32 s{self.sKs}, {2*8192}")
        e(f"s_mov_b32 s{self.sVs}, {1*8192}")
        e(f"s_mov_b32 s{self.sRamp}, 1")
        e("s_lshl_b32 s12, s9, 1")
        e("s_add_u32 s13, s12, s8")
        e(f"s_lshl_b32 s{self.sH0}, s13, 13")
        e("s_xor_b32 s13, s13, 1")
        e(f"s_lshl_b32 s{self.sH1}, s13, 13")

        def qaddr(dst, hh, tmp):
            e(f"s_and_b32 s{dst}, s{hh}, 1")
            e(f"s_lshl_b32 s{dst}, s{dst}, 15")
            e(f"s_lshr_b32 s{tmp}, s{hh}, 1")
            e(f"s_mul_i32 s{tmp}, s{tmp}, 57344")
            e(f"s_add_u32 s{dst}, s{dst}, s{tmp}")
            e(f"s_add_u32 s{dst}, s{dst}, 24576")

        QW = X + 18
        qaddr(14, self.sW, 15)
        for j in range(4):
            e(f"v_add_u32 v{QW+j}, s14, v{self.vKdma+j}")
        QA = self.vS + 48
        for sub in range(2):
            e(f"s_lshr_b32 s6, s{self.sH0 if sub == 0 else self.sH1}, 13")
            qaddr(14, 6, 15)
            e("s_sub_u32 s14, s14, s10")
            for ds in range(4):
                e(f"v_add_u32 v{QA+4*sub+ds}, s14, v{self.vKrd+ds}")
        e(f"s_sub_u32 s14, {self.LDS_T}, s10")
        for ds in range(4):
            e(f"v_add_u32 v{QA+8+ds}, s14, v{self.vKrd+ds}")
        c = f32hex(128 ** -0.5 * math.log2(math.e))
        e(f"s_mov_b32 s14, {c}")
        e(f"s_mov_b32 s15, {c}")
        e(f"s_mov_b32 s12, {f32hex(-1e9)}")
        e(f"s_mov_b32 s13, {f32hex(math.log2(math.e))}")
        for r in range(64):
            e(f"v_mov_b32 v{self.vO0+r}, 0")
        tick(4 - self.first_burst)
        for r in range(64):
            e(f"v_accvgpr_write_b32 a{self.aO1+r}, 0")
        for r in range(8, 16):
            e(f"v_mov_b32 {self.Pe(1, r)}, 0")
        for r in range(4):
            e(f"v_mov_b32 v{self.vL+r}, 0")
            e(f"v_mov_b32 v{self.vOne+r}, 0x3f803f80")
        tick(4)
        self.stamp(43)
        for j in range(8):
            waitfor(f"Q{j}")
            if j == 0:
                self.stamp(44)
            for i in range(4):
                src = self.vS + 4 * j + i
                t0 = T + 2 * (i % 3)
                e(f"v_lshlrev_b32 v{t0}, 16, v{src}")
                e(f"v_and_b32 v{t0+1}, 0xffff0000, v{src}")
                e(f"v_pk_mul_f32 v[{t0}:{t0+1}], v[{t0}:{t0+1}], s[14:15]")
                e(f"v_cvt_pk_bf16_f32 v{src}, v{t0}, v{t0+1}")
            bq = self.vS + 4 * j
            e(f"ds_write_b128 v{QW+(j&3)}, v[{bq}:{bq+3}] offset:{1024*j}")
            tick(1)
        self.stamp(45)
        waitfor("TK", " lgkmcnt(0)")
        self.stamp(47)
        e("s_barrier")
        self.stamp(48)
        kr0 = self.kreads(0)
        qr = [f"ds_read_b128 {self.Q(qt, ds)}, v{QA+4*(qt>>1)+ds} offset:{4096*(qt&1)}" for qt in range(4) for ds in range(4)]
        tr = [f"ds_read_b128 {self.r4('a', self.aV + 16*kt + 4*ds)}, v{QA+8+ds} offset:{4096*kt}"
              for kt in range(2) for ds in range(4)]
        reads = qr[0:4] + kr0 + qr[4:] + tr
        need = {0: 8, 4: 12, 8: 16, 16: 20, 24: 24, 32: 32}
        for x in reads[:14]:
            e(x)
        issued = 14
        qk = self.qk_mfmas(0, cinit="0")
        tq = []
        for qt in range(2):
            for kt in range(2):
                for ds in range(4):
                    cc = self.r4("v", self.vNM + 8 * qt + 4 * kt) if ds == 0 else self.S(1, qt, kt)
                    tq.append(f"{MF} {self.S(1, qt, kt)}, {self.r4('a', self.aV + 16*kt + 4*ds)}, {self.Q(qt, ds)}, {cc}")
        bias = []
        for i in range(8):
            src = X + i
            d0, d1 = self.vNM + 2 * i, self.vNM + 2 * i + 1
            bias.append(f"v_lshlrev_b32 v{d0}, 16, v{src}")
            bias.append(f"v_and_b32 v{d1}, 0xffff0000, v{src}")
            for d in (d0, d1):
                bias.append(f"v_sub_f32 v{d}, 1.0, v{d}")
                bias.append(f"v_mul_f32 v{d}, s12, v{d}")
                bias.append(f"v_mul_f32 v{d}, s13, v{d}")
        mx = [X + 8 + qt for qt in range(4)]
        mxl = []
        for qt in range(4):
            mxl += self.maxchain(mx[qt], [self.Se(0, 8 * qt + i) for i in range(8)])
        allm = qk + tq
        for i, x in enumerate(allm):
            if i in need:
                while issued < need[i]:
                    e(reads[issued])
                    issued += 1
                e(f"s_waitcnt lgkmcnt({issued - need[i]})")
                if i == 32:
                    e("s_nop 0")
            if i == 14:
                waitfor("M")
            e(x)
            if issued < len(reads):
                e(reads[issued])
                issued += 1
            if 14 <= i < 30:
                for y in bias[4 * (i - 14): 4 * (i - 14) + 4]:
                    e(y)
            if i >= 40:
                for y in mxl[2 * (i - 40): 2 * (i - 40) + 2]:
                    e(y)
            if i % 4 == 1:
                tick(1)
        tick(100)
        waitfor("TV")
        e("s_barrier")
        for x in self.vreads(3):
            e(x)
        self.stamp(49)
        for qt in (2, 3, 0, 1):
            if qt < 2:
                for y in self.maxchain(mx[qt], [self.Se(1, 8 * qt + i) for i in range(8)], first=False):
                    e(y)
            self.cross("v_max_f32", mx[qt], T, T + 1)
            for r in range(4):
                e(f"v_sub_f32 v{self.vNM+4*qt+r}, 0, v{mx[qt]}")
            for i in range(8):
                e(f"v_sub_f32 {self.Se(0, 8*qt+i)}, {self.Se(0, 8*qt+i)}, v{mx[qt]}")
        for qt in range(2):
            self.softmax_plain(1, qt, 1, mx[qt])
        e("s_nop 1")
        for qt in range(4):
            e(self.summ(1, qt))
        self.rstamp(62)
        e("s_waitcnt vmcnt(0) lgkmcnt(0)")
        e("s_nop 4")
        e("s_branch L_it3b")

    def iteration(self, q):
        e = self.e
        T = self.vT
        pb = q & 1
        nb = pb ^ 1
        NG = 64
        used = [0.0] * NG
        pre = [[] for _ in range(NG)]
        post = [[] for _ in range(NG)]
        for x, g in zip(self.kreads((q + 2) & 3), self.kread_gaps):
            post[g].append(x)
            used[g] += self.c_ds
        for x, g in zip(self.vreads((q + 1) & 3), self.vread_gaps):
            post[g].append(x)
            used[g] += self.c_ds
        dg = self.dma_gaps
        for gi, which in enumerate("KV"):
            m0, d, pst = self.run_group(which)
            g0 = dg[4 * gi]
            post[g0 - 1] += m0
            used[g0 - 1] += self.c_salu
            for j in range(4):
                post[dg[4 * gi + j]].append(d[j])
                used[dg[4 * gi + j]] += self.c_dma
            gl = dg[4 * gi + 3]
            post[gl] += pst[:1]
            post[gl + 1] += pst[1:]
            used[gl] += self.c_salu
            used[gl + 1] += 2 * self.c_salu
            if q in (3, 0):
                nm = "AB"[gi]
                post[gl + 2] += [f"s_cmp_lg_u32 s{self.sRamp}, 0", f"s_cbranch_scc1 L_stub{nm}{q}", f"L_stub{nm}{q}_back:"]
                used[gl + 2] += 2 * self.c_salu
        queue = []
        for qt in range(4):
            queue.append((4, f"v_add_f32 v{self.vL+qt}, v{self.vL+qt}, v{self.vTS+4*qt}", None))
        lag = 2
        for i in range(32 + lag):
            if i < 32:
                queue.append((8, f"v_exp_f32 v{T + (i % 8)}, {self.Se(nb, i)}", None))
            k = i - lag
            if 0 <= k < 32 and k & 1:
                queue.append((4, f"v_cvt_pk_bf16_f32 {self.Pe(nb, k >> 1)}, v{T + ((k-1) % 8)}, v{T + (k % 8)}",
                              (k >> 3) if k % 8 == 7 else None))
        fill = [[] for _ in range(NG)]
        qi = 0
        credit = 0.0
        last_sum_gap = None
        sums = []
        for g in range(NG):
            credit += self.budget - used[g]
            if sums and sums[0][0] <= g:
                fill[g].append(sums.pop(0)[1])
                credit += self.budget
                last_sum_gap = g
            while qi < len(queue) and (queue[qi][0] <= credit + 1e-9):
                c, x, sq = queue[qi]
                fill[g].append(x)
                credit -= c
                qi += 1
                if sq is not None:
                    sums.append((g + 2, self.summ(nb, sq)))
            credit = min(credit, 8.0)
            fill[g] += post[g]
        assert qi == len(queue) and not sums, "softmax does not fit the iteration"
        tail = []
        if q == 0:
            print("sched: last sum at gap", last_sum_gap, "left over", len(tail), [len(f) for f in fill], file=sys.stderr)
        check_ins = [f"v_max3_f32 v{T}, v{self.vTS}, v{self.vTS+4}, v{self.vTS+8}",
                     f"v_max_f32 v{T}, v{T}, v{self.vTS+12}",
                     f"v_cmp_lt_f32 vcc, s{self.sThr}, v{T}"]
        mf = [self.pv(pb, qt, dt) for qt in range(4) for dt in range(8)] + self.qk_mfmas(pb)
        self.lab(f"L_it{q}")
        if self.diag == 1:
            e("s_memtime s[80:81]")
        e("s_waitcnt vmcnt(16) lgkmcnt(0)")
        if q == 0:
            e(f"s_cmp_lg_u32 s{self.sRamp}, 0")
            e("s_cbranch_scc1 L_stubW")
            self.lab("L_stubW_back")
        if q == 3:
            self.lab("L_it3b")
        e("s_barrier")
        if self.diag == 1:
            e("s_memtime s[82:83]")
            e("v_cmp_eq_u32 s[92:93], s90, v0")
            e("v_mov_b32 v253, s80")
            e("s_nop 1")
            e("v_cndmask_b32 v254, v254, v253, s[92:93]")
        for i in range(NG):
            if i == 32:
                e("s_waitcnt lgkmcnt(0)")
                if self.diag == 1:
                    e("v_mov_b32 v253, s82")
                    e("v_cndmask_b32 v255, v255, v253, s[92:93]")
                    e("s_add_u32 s90, s90, 1")
            if not self.nomfma:
                e(mf[i])
            for x in fill[i]:
                if x.endswith(":"):
                    self.out.append(x)
                    continue
                if self.nodma and " lds" in x:
                    continue
                if self.nods and x.startswith("ds_"):
                    continue
                if self.novalu and x.startswith("v_") and not x.startswith("v_mfma"):
                    continue
                if self.nomfma and x.startswith("v_mfma"):
                    continue
                e(x)
        for x in tail:
            if x.startswith("v_mfma"):
                e("s_nop 1")
            e(x)
        n_after = 0
        for l in reversed(self.out):
            if MF in l and f" {self.TS(3)}," in l:
                break
            if not l.endswith(":"):
                n_after += 1
        if n_after < 8:
            e(f"s_nop {8 - n_after - 1}")
        for x in check_ins:
            e(x)
        if not (self.novalu or self.nomfma or self.nods or self.nodma):
            e(f"s_cbranch_vccnz L_rare{q}")
        self.lab(f"L_back{q}")
        if q == 2:
            e(f"s_add_u32 s{self.sCnt}, s{self.sCnt}, 1")
            e(f"s_cmp_eq_u32 s{self.sCnt}, 8")
            e("s_cbranch_scc1 L_epi")
        if q == 3:
            e("s_branch L_it0")

    def stubs(self):
        e = self.e
        for q in (3, 0):
            for nm, which in (("A", "V"), ("B", "K")):
                self.lab(f"L_stub{nm}{q}")
                pre, d, post = self.run_group(which)
                for x in pre + ["s_nop 0"] + d + post:
                    e(x)
                if q == 0 and nm == "B":
                    e(f"s_mov_b32 s{self.sRamp}, 0")
                e(f"s_branch L_stub{nm}{q}_back")
        self.lab("L_stubW")
        e("s_waitcnt vmcnt(8)")
        e("s_branch L_stubW_back")

    def rare(self, q):
        e = self.e
        T, X = self.vT, self.vX
        pb = q & 1
        nb = pb ^ 1
        self.lab(f"L_rare{q}")
        e("s_nop 7")
        d, al = X, X + 1
        for qt in range(4):
            for y in self.maxchain(d, [self.Se(nb, 8 * qt + i) for i in range(8)]):
                e(y)
            self.cross("v_max_f32", d, T, T + 1)
            e(f"v_max_f32 v{d}, 0, v{d}")
            e(f"v_exp_f32 v{al}, -v{d}")
            for r in range(4):
                e(f"v_sub_f32 v{self.vNM+4*qt+r}, v{self.vNM+4*qt+r}, v{d}")
            for i in range(8):
                e(f"v_sub_f32 {self.Se(pb, 8*qt+i)}, {self.Se(pb, 8*qt+i)}, v{d}")
            e(f"v_mul_f32 v{self.vL+qt}, v{self.vL+qt}, v{al}")
            for r in range(32):
                if qt < 2:
                    o = f"v{self.vO0 + 32*qt + r}"
                    e(f"v_mul_f32 {o}, {o}, v{al}")
                else:
                    o = f"a{self.aO1 + 32*(qt-2) + r}"
                    e(f"v_accvgpr_read_b32 v{X+2}, {o}")
                    e(f"v_mul_f32 v{X+2}, v{X+2}, v{al}")
                    e(f"v_accvgpr_write_b32 {o}, v{X+2}")
            self.softmax_plain(nb, qt, nb, d)
            e("s_nop 1")
            e(self.summ(nb, qt))
        e("s_nop 7")
        e(f"s_branch L_back{q}")

    def epilogue(self):
        e = self.e
        T, X = self.vT, self.vX
        self.lab("L_epi")
        pb = 1
        self.rstamp(63)
        self.stamp(50)
        e(f"s_lshl_b32 s6, s{self.sW}, 14")
        e(f"v_lshlrev_b32 v{T+4}, 4, v0")
        e(f"v_add_u32 v{X}, s6, v{T+4}")
        e(f"v_xor_b32 v{X+1}, 0x8000, v{X}")
        e(f"s_lshl_b32 s6, s{self.sW}, 10")
        e(f"s_add_u32 s6, s6, {self.LDS_T}")
        e(f"v_add_u32 v{X+2}, s6, v{T+4}")
        e(f"v_xor_b32 v{X+3}, 0x800, v{X+2}")
        e(f"v_mov_b32 v{X+4}, v{self.vNM+8}")
        e(f"v_mov_b32 v{X+5}, v{self.vNM+12}")
        e(f"v_add_f32 v{X+6}, v{self.vL+2}, v{self.vTS+8}")
        e(f"v_add_f32 v{X+7}, v{self.vL+3}, v{self.vTS+12}")
        e(f"v_add_f32 v{self.vL}, v{self.vL}, v{self.vTS}")
        e(f"v_add_f32 v{self.vL+1}, v{self.vL+1}, v{self.vTS+4}")
        e("s_waitcnt vmcnt(0) lgkmcnt(0)")
        e("s_barrier")
        self.stamp(51)
        e(f"ds_write_b128 v{X+2}, v[{X+4}:{X+7}]")
        order = [(qt, dt) for qt in (2, 3, 0, 1) for dt in range(8)]
        wr = [f"ds_write_b128 v{X}, a[{self.aO1+4*i}:{self.aO1+4*i+3}] offset:{1024*i}" for i in range(16)]
        OA = self.vS
        addr = [
            f"s_lshl_b32 s6, s{self.sW}, 13",
            f"s_add_u32 s6, s6, {self.LDS_V}",
            f"v_and_b32 v{T}, 15, v0",
            f"v_lshrrev_b32 v{T+1}, 5, v0",
            f"v_xor_b32 v{T+1}, v{T+1}, v{T}",
            f"v_lshlrev_b32 v{T+2}, 8, v{T}",
            f"v_lshl_or_b32 v{T+1}, v{T+1}, 4, v{T+2}",
            f"v_bfe_u32 v{T+2}, v0, 4, 1",
            f"v_lshl_or_b32 v{T+1}, v{T+2}, 3, v{T+1}",
            f"v_add_u32 v{OA}, s6, v{T+1}",
        ] + [f"v_xor_b32 v{OA+dt}, {dt << 5}, v{OA}" for dt in range(1, 8)] \
          + [f"v_add_u32 v{OA+8+j}, s6, v{self.vKdma+j}" for j in range(4)] \
          + [f"s_add_u32 s7, s{self.sH0}, 4096"]
        for n, (qt, dt) in enumerate(order):
            e(self.pv(pb, qt, dt))
            if n < 11:
                for y in addr[2 * n: 2 * n + 2]:
                    e(y)
            if 10 <= n < 26:
                e(wr[n - 10])
        e("s_waitcnt lgkmcnt(0)")
        self.stamp(52)
        e("s_barrier")
        self.stamp(53)
        e(f"ds_read_b128 v[{X+4}:{X+7}], v{X+3}")
        R = self.vS + 32
        e(f"v_mov_b32 v{X+8}, v{self.vNM}")
        e(f"v_mov_b32 v{X+9}, v{self.vNM+4}")
        for i in range(14):
            e(f"ds_read_b128 v[{R+4*i}:{R+4*i+3}], v{X+1} offset:{1024*i}")
        e("s_waitcnt lgkmcnt(14)")
        for i in range(14, 16):
            e(f"ds_read_b128 v[{R+4*i}:{R+4*i+3}], v{X+1} offset:{1024*i}")
        CA, CB = X + 12, X + 16
        for qt in range(2):
            e(f"v_min_f32 v{T}, v{X+8+qt}, v{X+4+qt}")
            e(f"v_sub_f32 v{CA+2*qt}, v{T}, v{X+8+qt}")
            e(f"v_sub_f32 v{CB+2*qt}, v{T}, v{X+4+qt}")
            e(f"v_exp_f32 v{CA+2*qt}, v{CA+2*qt}")
            e(f"v_exp_f32 v{CB+2*qt}, v{CB+2*qt}")
            e("s_nop 0")
            e(f"v_mul_f32 v{T}, v{self.vL+qt}, v{CA+2*qt}")
            e(f"v_fma_f32 v{T}, v{X+6+qt}, v{CB+2*qt}, v{T}")
            e(f"v_rcp_f32 v{T}, v{T}")
            e("s_nop 0")
            e(f"v_mul_f32 v{CA+2*qt}, v{CA+2*qt}, v{T}")
            e(f"v_mul_f32 v{CB+2*qt}, v{CB+2*qt}, v{T}")
        for i in range(0, 64, 2):
            b = self.vO0 + i
            qt = i // 32
            e(f"v_pk_mul_f32 v[{b}:{b+1}], v[{b}:{b+1}], v[{CA+2*qt}:{CA+2*qt+1}] op_sel_hi:[1,0]")
        PK = self.vP
        for i4 in range(16):
            qt, dt = i4 // 8, i4 % 8
            e(f"s_waitcnt lgkmcnt({15 - i4})")
            for h in range(2):
                b = self.vO0 + 4 * i4 + 2 * h
                e(f"v_pk_fma_f32 v[{b}:{b+1}], v[{R+4*i4+2*h}:{R+4*i4+2*h+1}], v[{CB+2*qt}:{CB+2*qt+1}], v[{b}:{b+1}] op_sel_hi:[1,0,1]")
        self.stamp(54)
        for i4 in range(16):
            qt, dt = i4 // 8, i4 % 8
            b = self.vO0 + 4 * i4
            e(f"v_cvt_pk_bf16_f32 v{PK+2*i4}, v{b}, v{b+1}")
            e(f"v_cvt_pk_bf16_f32 v{PK+2*i4+1}, v{b+2}, v{b+3}")
            e(f"ds_write_b64 v{OA+dt}, v[{PK+2*i4}:{PK+2*i4+1}] offset:{4096*qt}")
        e("s_waitcnt lgkmcnt(0)")
        for j in range(8):
            e(f"ds_read_b128 v[{R+4*j}:{R+4*j+3}], v{OA+8+(j&3)} offset:{1024*j}")
        for j in range(8):
            e(f"s_waitcnt lgkmcnt({7-j})")
            so = self.sH0 if j < 4 else 7
            e(f"buffer_store_dwordx4 v[{R+4*j}:{R+4*j+3}], v{T+4}, {self.srd(self.sO)}, s{so} offen offset:{1024*(j&3)}")
        if self.diag:
            self.stamp(55)
            e("s_waitcnt vmcnt(0) lgkmcnt(0)")
            e("s_memtime s[80:81]")
            e("s_memrealtime s[86:87]")
            e("s_waitcnt lgkmcnt(0)")
            e("v_writelane_b32 v254, s80, 1")
            e("v_writelane_b32 v255, s86, 1")
            e("s_lshl_b32 s6, s2, 2")
            e(f"s_add_u32 s6, s6, s{self.sW}")
            e("s_lshl_b32 s6, s6, 9")
            e("s_add_u32 s84, s84, s6")
            e("s_addc_u32 s85, s85, 0")
            e("s_and_b32 s85, s85, 0xffff")
            e("s_mov_b32 s86, 512")
            e("s_mov_b32 s87, 0x00020000")
            e("v_lshlrev_b32 v1, 3, v0")
            e("buffer_store_dwordx2 v[254:255], v1, s[84:87], 0 offen")
        self.lab("L_end")
        e("s_endpgm")

    def build(self):
        k = NAME + "_kernel"
        self.prologue()
        pro = list(self.out)
        self.out.append(".p2align 6")
        for _ in range(self.align_pad):
            self.e("s_nop 0")
        its = []
        for q in range(4):
            n0 = len(self.out)
            self.iteration(q)
            its.append(self.out[n0:])
        n0 = len(self.out)
        self.epilogue()
        epi = self.out[n0:]
        self.stubs()
        rares = []
        for q in range(4):
            n0 = len(self.out)
            self.rare(q)
            rares.append(self.out[n0:])
        errs = []

        def upto_exit(lines):
            idx = [i for i, l in enumerate(lines) if "L_epi" in l][0]
            return lines[: idx + 1]

        def from3b(lines):
            idx = [i for i, l in enumerate(lines) if l.startswith("L_it3b")][0]
            return lines[idx:]

        errs += check(pro + from3b(its[3]) + its[0] + its[1] + its[2] + its[3] + its[0], "main")
        errs += check(its[1] + upto_exit(its[2]) + epi, "exit")
        for q in range(4):
            errs += check(its[q] + rares[q] + its[(q + 1) & 3], f"rare{q}")
        errs += check(its[2] + rares[2] + epi, "rare-exit")
        for x in errs:
            print("HAZARD", x, file=sys.stderr)
        text = HEADER + f"; @launch grid=(256,1,1) block=(256,1,1) lds={self.LDS_BYTES}\n"
        text += '.amdgcn_target "amdgcn-amd-amdhsa--gfx950"\n.text\n'
        text += f".globl {k}\n.p2align 8\n.type {k},@function\n{k}:\n"
        text += "\n".join(self.out) + "\n"
        text += f""".section .rodata,"a"
.p2align 6
.amdhsa_kernel {k}
  .amdhsa_next_free_vgpr 512
  .amdhsa_next_free_sgpr 96
  .amdhsa_accum_offset 256
  .amdhsa_group_segment_fixed_size 0
  .amdhsa_kernarg_size 72
  .amdhsa_user_sgpr_count 2
  .amdhsa_user_sgpr_kernarg_segment_ptr 1
  .amdhsa_system_sgpr_workgroup_id_x 1
.end_amdhsa_kernel
"""
        return text, errs


if __name__ == "__main__":
    import argparse
    ap = argparse.ArgumentParser()
    ap.add_argument("-o", default=f"cdna_kernels/{NAME}.s")
    ap.add_argument("--nont", action="store_true")
    ap.add_argument("--diag", type=int, default=0)
    ap.add_argument("--pad", type=int, default=0)
    ap.add_argument("--dma", default=None)
    ap.add_argument("--kg", default=None)
    ap.add_argument("--vg", default=None)
    ap.add_argument("--budget", type=float, default=8.5)
    ap.add_argument("--c_ds", type=float, default=4)
    ap.add_argument("--c_dma", type=float, default=8)
    ap.add_argument("--c_salu", type=float, default=4)
    ap.add_argument("--fb", type=int, default=4)
    ap.add_argument("--thr", type=int, default=14)
    for f in ("nodma", "nods", "novalu", "nomfma"):
        ap.add_argument("--" + f, action="store_true")
    a = ap.parse_args()
    L = lambda s: [int(x) for x in s.split(",")] if s else None
    g = Gen(nt=not a.nont, diag=a.diag, dma_gaps=L(a.dma), kread_gaps=L(a.kg), vread_gaps=L(a.vg), budget=a.budget,
            c_ds=a.c_ds, c_dma=a.c_dma, c_salu=a.c_salu, first_burst=a.fb, align_pad=a.pad, thr_log2=a.thr,
            nodma=a.nodma, nods=a.nods, novalu=a.novalu, nomfma=a.nomfma)
    text, errs = g.build()
    open(a.o, "w").write(text)
    print("wrote", a.o, len(text), "bytes;", len(errs), "hazard reports")
```

```python
import math
import struct
import sys

from hazard import check

NAME = "standalone__tree_speculative_verify_tree_attention_over_candidate_token_tree__sampling"

HEADER = """; Kernarg layout for this problem (72 bytes, ptrs only, base s[0:1]):
;   offset  16: d_in[2] v_cache  shape=(32, 4, 2048, 128) dtype=bfloat16 strides=(2097152, 524288, 256, 2) contiguous=True
;   offset  32: d_in[4] v_tree  shape=(32, 4, 32, 128) dtype=bfloat16 strides=(32768, 8192, 256, 2) contiguous=True
; grid=ceil(out_elems/256), lds=0). Harness parses it; keep it on one line.
"""

MF = "v_mfma_f32_16x16x32_bf16"


def f32hex(x):
    return "0x%08x" % struct.unpack("<I", struct.pack("<f", x))[0]


class Gen:
    def __init__(self, nt=True, diag=0, dma_gaps=None, kread_gaps=None, vread_gaps=None, budget=8.5,
                 c_ds=4, c_dma=8, c_salu=4, first_burst=4, align_pad=0, thr_log2=14, q_start=0,
                 nodma=False, nods=False, novalu=False, nomfma=False, c_exp=8, lag=2, exp_end=54):
        self.exp_end = exp_end
        self.c_exp, self.lag = c_exp, lag
        self.nt, self.diag = nt, diag
        self.dma_gaps = dma_gaps or [4, 12, 20, 28, 38, 46, 54, 61]
        self.kread_gaps = kread_gaps or [0, 24]
        self.vread_gaps = vread_gaps or [8, 59]
        self.budget, self.c_ds, self.c_dma, self.c_salu = budget, c_ds, c_dma, c_salu
        self.first_burst, self.align_pad, self.thr_log2 = first_burst, align_pad, thr_log2
        self.q_start = q_start
        self.nodma, self.nods, self.novalu, self.nomfma = nodma, nods, novalu, nomfma
        self.out = []
        self.vKrd = 2
        self.vVrd = 6
        self.vKdma = 14
        self.vVdma = 18
        self.vL = 20
        self.vT = 24
        self.vS = 32
        self.vNM = 96
        self.vTS = 112
        self.vP = 128
        self.vO0 = 160
        self.vX = 224
        self.vOne = 248
        self.aO1, self.aQ, self.aK, self.aV = 0, 64, 128, 192
        self.sK, self.sV, self.sQ, self.sKT, self.sVT, self.sM, self.sO = 36, 40, 44, 48, 52, 56, 60
        self.sKoff, self.sVoff, self.sKdst, self.sVdst, self.sCnt, self.sThr, self.sC = 64, 65, 66, 67, 68, 69, 70
        self.sH0, self.sH1, self.sW, self.sW4k = 71, 72, 3, 73
        self.sKs, self.sVs, self.sRamp = 32, 33, 34
        self.LDS_V, self.LDS_T = 65536, 131072
        self.LDS_BYTES = 147456

    def e(self, s):
        self.out.append("    " + s)

    def lab(self, s):
        self.out.append(s + ":")

    def stamp(self, lane):
        if self.diag == 1 or (self.diag and lane >= 62):
            self.e("s_memtime s[80:81]")
            self.e("s_waitcnt lgkmcnt(0)")
            self.e(f"v_writelane_b32 v254, s80, {lane}")

    def rstamp(self, lane):
        if self.diag:
            self.e("s_memrealtime s[80:81]")
            self.e("s_waitcnt lgkmcnt(0)")
            self.e(f"v_writelane_b32 v255, s80, {lane}")
            self.stamp(lane)

    @staticmethod
    def r4(f, b):
        return f"{f}[{b}:{b+3}]"

    def S(self, buf, qt, kt):
        return self.r4("v", self.vS + 32 * buf + 8 * qt + 4 * kt)

    def Se(self, buf, i):
        return f"v{self.vS + 32 * buf + i}"

    def NM(self, qt):
        return self.r4("v", self.vNM + 4 * qt)

    def TS(self, qt):
        return self.r4("v", self.vTS + 4 * qt)

    def P(self, buf, qt):
        return self.r4("v", self.vP + 16 * buf + 4 * qt)

    def Pe(self, buf, i):
        return f"v{self.vP + 16 * buf + i}"

    def O(self, qt, dt):
        if qt < 2:
            return self.r4("v", self.vO0 + 32 * qt + 4 * dt)
        return self.r4("a", self.aO1 + 32 * (qt - 2) + 4 * dt)

    def Q(self, qt, ds):
        return self.r4("a", self.aQ + 16 * qt + 4 * ds)

    def Kf(self, kt, ds):
        return self.r4("a", self.aK + 16 * kt + 4 * ds)

    def Vf(self, dt):
        return self.r4("a", self.aV + 4 * dt)

    def srd(self, s):
        return f"s[{s}:{s+3}]"

    def dma(self, vreg, srd, soff, j):
        nt = " nt" if self.nt else ""
        return f"buffer_load_dwordx4 v{vreg}, {self.srd(srd)}, s{soff} offen offset:{1024*j}{nt} lds"

    def kdmas(self, srd, soff):
        return [self.dma(self.vKdma + j, srd, soff, j) for j in range(4)]

    def vdmas(self, srd, soff):
        return [self.dma(self.vVdma + (j & 1), srd, soff, j) for j in range(4)]

    def run_group(self, which):
        if which == "K":
            return ([f"s_add_u32 m0, s{self.sKdst}, s{self.sKs}"], self.kdmas(self.sK, self.sKoff),
                    [f"s_add_u32 s{self.sKoff}, s{self.sKoff}, 16384",
                     f"s_add_u32 s{self.sKs}, s{self.sKs}, 0x2000",
                     f"s_and_b32 s{self.sKs}, s{self.sKs}, 0x6000"])
        return ([f"s_add_u32 m0, s{self.sVdst}, s{self.sVs}"], self.vdmas(self.sV, self.sVoff),
                [f"s_add_u32 s{self.sVoff}, s{self.sVoff}, 16384",
                 f"s_add_u32 s{self.sVs}, s{self.sVs}, 0x2000",
                 f"s_and_b32 s{self.sVs}, s{self.sVs}, 0x6000"])

    def kreads(self, slot):
        return [f"ds_read_b128 {self.Kf(kt, ds)}, v{self.vKrd+ds} offset:{slot*8192 + kt*4096}"
                for kt in range(2) for ds in range(4)]

    def vreads(self, slot):
        out = []
        for dt in range(8):
            for e_ in range(2):
                b = self.aV + 4 * dt + 2 * e_
                out.append(f"ds_read_b64_tr_b16 a[{b}:{b+1}], v{self.vVrd+dt} offset:{slot*8192 + 4096*e_}")
        return out

    def qk_mfmas(self, sbuf, cinit=None, qts=range(4)):
        out = []
        for qt in qts:
            for kt in range(2):
                for ds in range(4):
                    c = (cinit if cinit is not None else self.NM(qt)) if ds == 0 else self.S(sbuf, qt, kt)
                    out.append(f"{MF} {self.S(sbuf, qt, kt)}, {self.Kf(kt, ds)}, {self.Q(qt, ds)}, {c}")
        return out

    def pv(self, pbuf, qt, dt):
        o = self.O(qt, dt)
        return f"{MF} {o}, {self.Vf(dt)}, {self.P(pbuf, qt)}, {o}"

    def summ(self, pbuf, qt):
        return f"{MF} {self.TS(qt)}, {self.r4('v', self.vOne)}, {self.P(pbuf, qt)}, 0"

    def cross(self, op, x, t0, t1):
        for sw in ("v_permlane16_swap_b32", "v_permlane32_swap_b32"):
            self.e(f"v_mov_b32 v{t0}, v{x}")
            self.e(f"v_mov_b32 v{t1}, v{x}")
            self.e("s_nop 1")
            self.e(f"{sw} v{t0}, v{t1}")
            self.e("s_nop 1")
            self.e(f"{op} v{x}, v{t0}, v{t1}")

    def maxchain(self, dst, regs, first=True):
        regs = list(regs)
        out = []
        if first:
            out.append(f"v_max3_f32 v{dst}, {regs[0]}, {regs[1]}, {regs[2]}")
            regs = regs[3:]
        while len(regs) >= 2:
            out.append(f"v_max3_f32 v{dst}, v{dst}, {regs[0]}, {regs[1]}")
            regs = regs[2:]
        if regs:
            out.append(f"v_max_f32 v{dst}, v{dst}, {regs[0]}")
        return out

    def softmax_plain(self, sbuf, qt, pbuf, sub_reg):
        T = self.vT
        for i in range(8):
            self.e(f"v_sub_f32 v{T+i}, {self.Se(sbuf, 8*qt+i)}, v{sub_reg}")
        for i in range(8):
            self.e(f"v_exp_f32 v{T+i}, v{T+i}")
        self.e("s_nop 0")
        for i in range(4):
            self.e(f"v_cvt_pk_bf16_f32 {self.Pe(pbuf, 4*qt+i)}, v{T+2*i}, v{T+2*i+1}")

    def prologue(self):
        e = self.e
        T, X = self.vT, self.vX
        e("s_cmp_ge_u32 s2, 256")
        e("s_cbranch_scc1 L_end")
        e("s_load_dwordx16 s[16:31], s[0:1], 0")
        if self.diag:
            e("s_load_dwordx2 s[84:85], s[0:1], 64")
            e("s_memtime s[80:81]")
            e("s_memrealtime s[86:87]")
            e("s_mov_b32 s90, 2")
            e("v_mov_b32 v254, 0")
            e("v_mov_b32 v255, 0")
        e("v_lshrrev_b32 v1, 6, v0")
        e("v_and_b32 v0, 63, v0")
        e(f"v_readfirstlane_b32 s{self.sW}, v1")
        e("s_and_b32 s6, s2, 7")
        e("s_lshr_b32 s7, s2, 3")
        e("s_and_b32 s5, s7, 1")
        e("s_lshr_b32 s7, s7, 1")
        e("s_lshl_b32 s7, s7, 3")
        e("s_or_b32 s4, s7, s6")
        e(f"v_and_b32 v{T}, 15, v0")
        e(f"v_lshrrev_b32 v{T+1}, 4, v0")
        e(f"v_lshlrev_b32 v{X+16}, 4, v0")
        e(f"s_lshr_b32 s8, s{self.sW}, 1")
        e(f"s_and_b32 s9, s{self.sW}, 1")
        e("s_lshl_b32 s10, s8, 15")
        e("s_lshl_b32 s11, s9, 12")
        e(f"s_lshl_b32 s{self.sW4k}, s{self.sW}, 12")
        e("s_lshl_b32 s6, s4, 19")
        e("s_lshl_b32 s7, s4, 16")
        e("s_lshl_b32 s12, s5, 15")
        e("s_add_u32 s7, s7, s12")
        e("s_lshl_b32 s12, s4, 13")
        e("s_lshr_b32 s13, s4, 2")
        e("s_lshl_b32 s13, s13, 11")
        e(f"s_lshl_b32 s14, s{self.sW}, 13")
        e("s_add_u32 s15, s14, 4096")
        e(f"v_xor_b32 v{T+2}, v{T}, v{T+1}")
        e(f"v_lshlrev_b32 v{T+3}, 8, v{T+1}")
        e(f"v_lshl_or_b32 v{self.vKdma}, v{T+2}, 4, v{T+3}")
        for j in range(1, 4):
            e(f"v_xor_b32 v{self.vKdma+j}, {j << 6}, v{self.vKdma}")
        e(f"s_add_u32 s{self.sKdst}, s10, s11")
        e(f"s_add_u32 s{self.sVdst}, s{self.sKdst}, {self.LDS_V}")
        e(f"s_mov_b32 s{self.sKoff}, s{self.sW4k}")
        e(f"s_mov_b32 s{self.sVoff}, s{self.sW4k}")
        e("s_waitcnt lgkmcnt(0)")
        if self.diag:
            e("v_writelane_b32 v254, s80, 0")
            e("v_writelane_b32 v255, s86, 0")

        def mk(srd, ptr, off, size):
            e(f"s_add_u32 s{srd}, s{ptr}, s{off}")
            e(f"s_addc_u32 s{srd+1}, s{ptr+1}, 0")
            e(f"s_and_b32 s{srd+1}, s{srd+1}, 0xffff")
            e(f"s_mov_b32 s{srd+2}, {size}")
            e(f"s_mov_b32 s{srd+3}, 0x00020000")

        vm = [0]
        done = {}
        pend = []

        def add_group(tag, m0, dmas, post=()):
            for i, x in enumerate(dmas):
                pend.append((tag, [m0, "s_nop 0"] if i == 0 else [], x, list(post) if i == 3 else []))

        def tick(n=1):
            for _ in range(n):
                if not pend:
                    return
                tag, pre, x, post = pend.pop(0)
                for y in pre:
                    e(y)
                e(x)
                vm[0] += 1
                done[tag] = vm[0]
                for y in post:
                    e(y)

        def waitfor(tag, extra=""):
            assert not any(p[0] == tag for p in pend), tag
            e(f"s_waitcnt vmcnt({vm[0] - done[tag]}){extra}")

        self.stamp(40)
        mk(self.sQ, 16, 7, 32768)
        for j in range(8):
            bq = self.vS + 4 * j
            pend.append((f"Q{j}", [], f"buffer_load_dwordx4 v[{bq}:{bq+3}], v{X+16}, {self.srd(self.sQ)}, "
                         f"s{14 + j // 4} offen offset:{1024*(j%4)}", []))
        tick(8)
        mk(self.sK, 18, 6, 524288)
        add_group("K0", f"s_mov_b32 m0, s{self.sKdst}", self.kdmas(self.sK, self.sKoff),
                  [f"s_add_u32 s{self.sKoff}, s{self.sKoff}, 16384"])
        tick(self.first_burst)
        self.stamp(41)
        mk(self.sKT, 22, 12, 8192)
        mk(self.sM, 26, 13, 2048)
        mk(self.sVT, 24, 12, 8192)
        mk(self.sV, 20, 6, 524288)
        mk(self.sO, 28, 7, 32768)
        e(f"v_lshlrev_b32 v{T+4}, 1, v{T+1}")
        e(f"v_xor_b32 v{T+4}, v{T}, v{T+4}")
        e(f"v_lshl_or_b32 v{self.vVdma}, v{T+4}, 4, v{T+3}")
        e(f"v_xor_b32 v{self.vVdma+1}, 0x80, v{self.vVdma}")
        e(f"v_lshlrev_b32 v{X+17}, 6, v{T}")
        e(f"v_lshl_or_b32 v{X+17}, v{T+1}, 3, v{X+17}")
        add_group("TK", f"s_add_u32 m0, s{self.sW4k}, {self.LDS_T}", self.kdmas(self.sKT, self.sW4k))
        for qt in range(2):
            for kt in range(2):
                bq = X + 4 * qt + 2 * kt
                pend.append(("M", [], f"buffer_load_dwordx2 v[{bq}:{bq+1}], v{X+17}, {self.srd(self.sM)}, 0 offen "
                             f"offset:{1024*qt + 32*kt}", []))
        add_group("TV", f"s_add_u32 m0, s{self.sVdst}, {3*8192}", self.vdmas(self.sVT, 11))
        add_group("K1", f"s_add_u32 m0, s{self.sKdst}, 8192", self.kdmas(self.sK, self.sKoff),
                  [f"s_add_u32 s{self.sKoff}, s{self.sKoff}, {3*16384}"])
        add_group("V0", f"s_mov_b32 m0, s{self.sVdst}", self.vdmas(self.sV, self.sVoff),
                  [f"s_add_u32 s{self.sVoff}, s{self.sVoff}, {3*16384}"])
        e(f"v_lshlrev_b32 v{T+4}, 8, v{T}")
        e(f"v_lshl_or_b32 v{self.vKrd}, v{T+2}, 4, v{T+4}")
        e(f"v_add_u32 v{self.vKrd}, s10, v{self.vKrd}")
        for ds in range(1, 4):
            e(f"v_xor_b32 v{self.vKrd+ds}, {ds << 6}, v{self.vKrd}")
        e(f"v_lshrrev_b32 v{T+4}, 2, v0")
        e(f"v_and_b32 v{T+5}, 7, v{T+4}")
        e(f"v_lshlrev_b32 v{T+4}, 8, v{T+4}")
        e(f"v_lshl_or_b32 v{T+4}, v{T+5}, 5, v{T+4}")
        e(f"v_and_b32 v{T+5}, 3, v0")
        e(f"v_lshl_or_b32 v{T+4}, v{T+5}, 3, v{T+4}")
        e(f"s_add_u32 s14, s10, {self.LDS_V}")
        e(f"v_add_u32 v{self.vVrd}, s14, v{T+4}")
        for dt in range(1, 8):
            e(f"v_xor_b32 v{self.vVrd+dt}, {dt << 5}, v{self.vVrd}")
        e(f"s_mov_b32 s{self.sThr}, {f32hex(2.0**self.thr_log2)}")
        e(f"s_mov_b32 s{self.sCnt}, 0")
        e(f"s_mov_b32 s{self.sRamp}, 1")
        e("s_lshl_b32 s12, s9, 1")
        e("s_add_u32 s13, s12, s8")
        e(f"s_lshl_b32 s{self.sH0}, s13, 13")
        e("s_xor_b32 s13, s13, 1")
        e(f"s_lshl_b32 s{self.sH1}, s13, 13")

        def qaddr(dst, hh, tmp):
            e(f"s_and_b32 s{dst}, s{hh}, 1")
            e(f"s_lshl_b32 s{dst}, s{dst}, 15")
            e(f"s_lshr_b32 s{tmp}, s{hh}, 1")
            e(f"s_mul_i32 s{tmp}, s{tmp}, 57344")
            e(f"s_add_u32 s{dst}, s{dst}, s{tmp}")
            e(f"s_add_u32 s{dst}, s{dst}, 24576")

        QW = X + 18
        qaddr(14, self.sW, 15)
        for j in range(4):
            e(f"v_add_u32 v{QW+j}, s14, v{self.vKdma+j}")
        QA = self.vS + 48
        for sub in range(2):
            e(f"s_lshr_b32 s6, s{self.sH0 if sub == 0 else self.sH1}, 13")
            qaddr(14, 6, 15)
            e("s_sub_u32 s14, s14, s10")
            for ds in range(4):
                e(f"v_add_u32 v{QA+4*sub+ds}, s14, v{self.vKrd+ds}")
        e(f"s_sub_u32 s14, {self.LDS_T}, s10")
        for ds in range(4):
            e(f"v_add_u32 v{QA+8+ds}, s14, v{self.vKrd+ds}")
        c = f32hex(128 ** -0.5 * math.log2(math.e))
        e(f"s_mov_b32 s14, {c}")
        e(f"s_mov_b32 s15, {c}")
        e(f"s_mov_b32 s12, {f32hex(-1e9)}")
        e(f"s_mov_b32 s13, {f32hex(math.log2(math.e))}")
        for r in range(64):
            e(f"v_mov_b32 v{self.vO0+r}, 0")
        tick(4 - self.first_burst)
        for r in range(64):
            e(f"v_accvgpr_write_b32 a{self.aO1+r}, 0")
        for r in range(8, 16):
            e(f"v_mov_b32 {self.Pe(1, r)}, 0")
        for r in range(4):
            e(f"v_mov_b32 v{self.vL+r}, 0")
            e(f"v_mov_b32 v{self.vOne+r}, 0x3f803f80")
        tick(4)
        self.stamp(43)
        for j in range(8):
            waitfor(f"Q{j}")
            if j == 0:
                self.stamp(44)
            for i in range(4):
                src = self.vS + 4 * j + i
                t0 = T + 2 * (i % 3)
                e(f"v_lshlrev_b32 v{t0}, 16, v{src}")
                e(f"v_and_b32 v{t0+1}, 0xffff0000, v{src}")
                e(f"v_pk_mul_f32 v[{t0}:{t0+1}], v[{t0}:{t0+1}], s[14:15]")
                e(f"v_cvt_pk_bf16_f32 v{src}, v{t0}, v{t0+1}")
            bq = self.vS + 4 * j
            e(f"ds_write_b128 v{QW+(j&3)}, v[{bq}:{bq+3}] offset:{1024*j}")
            tick(1)
        self.stamp(45)
        waitfor("TK", " lgkmcnt(0)")
        self.stamp(47)
        e("s_barrier")
        self.stamp(48)
        kr0 = self.kreads(0)
        qr = [f"ds_read_b128 {self.Q(qt, ds)}, v{QA+4*(qt>>1)+ds} offset:{4096*(qt&1)}" for qt in range(4) for ds in range(4)]
        tr = [f"ds_read_b128 {self.r4('a', self.aV + 16*kt + 4*ds)}, v{QA+8+ds} offset:{4096*kt}"
              for kt in range(2) for ds in range(4)]
        reads = qr[0:4] + kr0 + qr[4:] + tr
        need = {0: 8, 4: 12, 8: 16, 16: 20, 24: 24, 32: 32}
        for x in reads[:14]:
            e(x)
        issued = 14
        qk = self.qk_mfmas(0, cinit="0")
        tq = []
        for qt in range(2):
            for kt in range(2):
                for ds in range(4):
                    cc = self.r4("v", self.vNM + 8 * qt + 4 * kt) if ds == 0 else self.S(1, qt, kt)
                    tq.append(f"{MF} {self.S(1, qt, kt)}, {self.r4('a', self.aV + 16*kt + 4*ds)}, {self.Q(qt, ds)}, {cc}")
        bias = []
        for i in range(8):
            src = X + i
            d0, d1 = self.vNM + 2 * i, self.vNM + 2 * i + 1
            bias.append(f"v_lshlrev_b32 v{d0}, 16, v{src}")
            bias.append(f"v_and_b32 v{d1}, 0xffff0000, v{src}")
            for d in (d0, d1):
                bias.append(f"v_sub_f32 v{d}, 1.0, v{d}")
                bias.append(f"v_mul_f32 v{d}, s12, v{d}")
                bias.append(f"v_mul_f32 v{d}, s13, v{d}")
        mx = [X + 8 + qt for qt in range(4)]
        mxl = []
        for qt in range(4):
            mxl += self.maxchain(mx[qt], [self.Se(0, 8 * qt + i) for i in range(8)])
        allm = qk + tq
        for i, x in enumerate(allm):
            if i in need:
                while issued < need[i]:
                    e(reads[issued])
                    issued += 1
                e(f"s_waitcnt lgkmcnt({issued - need[i]})")
                if i == 32:
                    e("s_nop 0")
            if i == 14:
                waitfor("M")
            e(x)
            if issued < len(reads):
                e(reads[issued])
                issued += 1
            if 14 <= i < 30:
                for y in bias[4 * (i - 14): 4 * (i - 14) + 4]:
                    e(y)
            if i >= 40:
                for y in mxl[2 * (i - 40): 2 * (i - 40) + 2]:
                    e(y)
            if i % 4 == 1:
                tick(1)
        tick(100)
        waitfor("TV")
        e("s_barrier")
        for x in self.vreads(3):
            e(x)
        self.stamp(49)
        for qt in (2, 3, 0, 1):
            if qt < 2:
                for y in self.maxchain(mx[qt], [self.Se(1, 8 * qt + i) for i in range(8)], first=False):
                    e(y)
            self.cross("v_max_f32", mx[qt], T, T + 1)
            for r in range(4):
                e(f"v_sub_f32 v{self.vNM+4*qt+r}, 0, v{mx[qt]}")
            for i in range(8):
                e(f"v_sub_f32 {self.Se(0, 8*qt+i)}, {self.Se(0, 8*qt+i)}, v{mx[qt]}")
        for qt in range(2):
            self.softmax_plain(1, qt, 1, mx[qt])
        e("s_nop 1")
        for qt in range(4):
            e(self.summ(1, qt))
        self.rstamp(62)
        e("s_waitcnt vmcnt(0) lgkmcnt(0)")
        e("s_nop 4")
        e("s_branch L_it3b")

    def iteration(self, q):
        e = self.e
        T = self.vT
        pb = q & 1
        nb = pb ^ 1
        NG = 64
        cap = self.budget
        sm = []
        for qt in range(4):
            sm.append((4, f"v_add_f32 v{self.vL+qt}, v{self.vL+qt}, v{self.vTS+4*qt}", None))
        lag = self.lag
        for i in range(32 + lag):
            if i < 32:
                sm.append((self.c_exp, f"v_exp_f32 v{T + (i % 8)}, {self.Se(nb, i)}", None))
            k = i - lag
            if 0 <= k < 32 and k & 1:
                sm.append((4, f"v_cvt_pk_bf16_f32 {self.Pe(nb, k >> 1)}, v{T + ((k-1) % 8)}, v{T + (k % 8)}",
                           (k >> 3) if k % 8 == 7 else None))
        kr = [(self.c_ds, x) for x in self.kreads((q + 2) & 3)]
        vr = [(self.c_ds, x) for x in self.vreads((q + 1) & 3)]
        dm = []
        dg = self.dma_gaps
        for gi, which in enumerate("KV"):
            if which == "K":
                m0 = f"s_add_u32 m0, s{self.sKdst}, {((q+1)&3)*8192}"
                d = self.kdmas(self.sK, self.sKoff)
                adv = f"s_add_u32 s{self.sKoff}, s{self.sKoff}, 16384"
            else:
                m0 = f"s_add_u32 m0, s{self.sVdst}, {(q&3)*8192}"
                d = self.vdmas(self.sV, self.sVoff)
                adv = f"s_add_u32 s{self.sVoff}, s{self.sVoff}, 16384"
            if q in (3, 0) and gi == 0:
                nm = "AB"[gi]
                dm.append((dg[4 * gi] - 3, 2 * self.c_salu,
                           [f"s_cmp_lg_u32 s{self.sRamp}, 0", f"s_cbranch_scc1 L_stub{nm}{q}", f"L_stub{nm}{q}_back:"]))
            dm.append((dg[4 * gi] - 1, self.c_salu, [m0]))
            for j in range(4):
                dm.append((dg[4 * gi + j], self.c_dma, [d[j]]))
            dm.append((dg[4 * gi + 3] + 1, self.c_salu, [adv]))
        fill = [[] for _ in range(NG)]
        sums = []
        last_sum_gap = None
        lastm0 = None
        exps = [f"v_exp_f32 v{T + (i % 8)}, {self.Se(nb, i)}" for i in range(32)]
        cvts = [f"v_cvt_pk_bf16_f32 {self.Pe(nb, k)}, v{T + ((2*k) % 8)}, v{T + ((2*k+1) % 8)}" for k in range(16)]
        ladd = [f"v_add_f32 v{self.vL+qt}, v{self.vL+qt}, v{self.vTS+4*qt}" for qt in range(4)]
        krl = [x for _, x in kr]
        vrl = [x for _, x in vr]
        ne = nc = nk = nv = 0
        exp_slot = {}
        slot = 0
        exp_end, k_end, v_end = self.exp_end, self.kread_gaps[-1], self.vread_gaps[-1]
        v_first = self.vread_gaps[0]
        last_ds2 = -9
        for g in range(NG):
            subs = 2 if (sums and sums[0][0] <= g) else 1
            for sub in range(subs):
                if sub == 1:
                    fill[g].append(sums.pop(0)[1])
                    last_sum_gap = g
                slot += 1
                b = 8
                free_salu = g != 31

                def valu_ready():
                    n = len(ladd)
                    ncv = nc
                    while ncv < 16 and 2 * ncv + 1 < ne and exp_slot[2 * ncv + 1] < slot:
                        n += 1
                        ncv += 1
                    return n

                def place_valu():
                    nonlocal nc
                    if ladd:
                        fill[g].append(ladd.pop(0))
                    else:
                        fill[g].append(cvts[nc])
                        if nc % 4 == 3:
                            sums.append((g + 2, self.summ(nb, nc // 4)))
                        nc += 1

                def ds_next():
                    kavail = nk < 8
                    vavail = nv < 16 and g >= max(v_first, 4 * (nv // 2) + 4)
                    kdue = kavail and nk < (g + 1) * 8 / (k_end + 1)
                    vdue = vavail and nv < (g - v_first + 1) * 16 / (v_end - v_first + 1)
                    if kdue:
                        return "k", True
                    if vdue:
                        return "v", True
                    if kavail:
                        return "k", False
                    if vavail:
                        return "v", False
                    return None, False

                def place_ds(kind):
                    nonlocal nk, nv
                    if kind == "k":
                        fill[g].append(krl[nk])
                        nk += 1
                    else:
                        fill[g].append(vrl[nv])
                        nv += 1

                while dm and dm[0][0] <= g:
                    ins = dm[0][2]
                    if " lds" in ins[0]:
                        if lastm0 == slot or b < 8:
                            break
                        b = 0
                    else:
                        n_s = len([x for x in ins if not x.endswith(":")])
                        cost = 4 * (n_s - (1 if free_salu else 0))
                        if cost > b or (not free_salu and b < 8):
                            break
                        b -= cost
                        free_salu = False
                        if "m0" in ins[0]:
                            lastm0 = slot
                    fill[g] += ins
                    dm.pop(0)
                if b == 0:
                    continue
                nval = valu_ready()
                kind, due = ds_next()
                exp_ok = ne < 32 and (ne < 8 or (ne - 8) // 2 < nc) and b >= 8
                behind = ne < (g + 1) * 32 / (exp_end + 1)
                pair_ok = (nval >= 1 and kind is not None) or nval >= 2
                late_ds = due and ((kind == "k" and g >= k_end - 2 * (8 - nk)) or (kind == "v" and g >= v_end - (16 - nv) // 2))
                if exp_ok and (behind or not pair_ok) and not late_ds and not (pair_ok and due and not behind):
                    fill[g].append(exps[ne])
                    exp_slot[ne] = slot
                    ne += 1
                    continue
                if kind is not None and (due or nval < 2):
                    place_ds(kind)
                    b -= 4
                    if b >= 4:
                        if valu_ready():
                            place_valu()
                        else:
                            k2, d2 = ds_next()
                            if k2 == "v" and kind == "v" and (slot - last_ds2 >= 2 or ne == 32):
                                place_ds(k2)
                                last_ds2 = slot
                elif nval:
                    place_valu()
                    b -= 4
                    if b >= 4 and valu_ready():
                        place_valu()
                elif exp_ok:
                    fill[g].append(exps[ne])
                    exp_slot[ne] = slot
                    ne += 1
        assert not dm and nk == 8 and nv == 16, (len(dm), nk, nv)
        assert ne == 32 and nc == 16 and not sums, ("softmax does not fit", ne, nc, len(sums))
        tail = []
        if q == 0:
            print("sched: last sum at gap", last_sum_gap, "left over", len(tail), [len(f) for f in fill], file=sys.stderr)
        check_ins = [f"v_max3_f32 v{T}, v{self.vTS}, v{self.vTS+4}, v{self.vTS+8}",
                     f"v_max_f32 v{T}, v{T}, v{self.vTS+12}",
                     f"v_cmp_lt_f32 vcc, s{self.sThr}, v{T}"]
        mf = [self.pv(pb, qt, dt) for dt in range(8) for qt in range(4)] + self.qk_mfmas(pb)
        self.lab(f"L_it{q}")
        if self.diag == 1:
            e("s_memtime s[80:81]")
        e("s_waitcnt vmcnt(16) lgkmcnt(0)")
        if q in (0, 1):
            e(f"s_cmp_lg_u32 s{self.sRamp}, 0")
            e(f"s_cbranch_scc1 L_stubW{q}")
            self.lab(f"L_stubW{q}_back")
        if q == 3:
            self.lab("L_it3b")
        e("s_barrier")
        if self.diag == 1:
            e("s_memtime s[82:83]")
            e("v_cmp_eq_u32 s[92:93], s90, v0")
            e("v_mov_b32 v253, s80")
            e("s_nop 1")
            e("v_cndmask_b32 v254, v254, v253, s[92:93]")
        for i in range(NG):
            if i == 32:
                nv_after = 0
                for l in reversed(self.out):
                    if "ds_read_b128" in l:
                        break
                    if "ds_read_b64_tr" in l:
                        nv_after += 1
                e(f"s_waitcnt lgkmcnt({min(15, nv_after) if self.diag != 1 else 0})")
                if self.diag == 1:
                    e("v_mov_b32 v253, s82")
                    e("v_cndmask_b32 v255, v255, v253, s[92:93]")
                    e("s_add_u32 s90, s90, 1")
            if not self.nomfma:
                e(mf[i])
            for x in fill[i]:
                if x.endswith(":"):
                    self.out.append(x)
                    continue
                if self.nodma and " lds" in x:
                    continue
                if self.nods and x.startswith("ds_"):
                    continue
                if self.novalu and x.startswith("v_") and not x.startswith("v_mfma"):
                    continue
                if self.nomfma and x.startswith("v_mfma"):
                    continue
                e(x)
        for x in tail:
            if x.startswith("v_mfma"):
                e("s_nop 1")
            e(x)
        n_after = 0
        for l in reversed(self.out):
            if MF in l and f" {self.TS(3)}," in l:
                break
            if not l.endswith(":"):
                n_after += 1
        if n_after < 8:
            e(f"s_nop {8 - n_after - 1}")
        for x in check_ins:
            e(x)
        if not (self.novalu or self.nomfma or self.nods or self.nodma):
            e(f"s_cbranch_vccnz L_rare{q}")
        self.lab(f"L_back{q}")
        if q == 2:
            e(f"s_add_u32 s{self.sCnt}, s{self.sCnt}, 1")
            e(f"s_cmp_eq_u32 s{self.sCnt}, 8")
            e("s_cbranch_scc1 L_epi")
        if q == 3:
            e("s_branch L_it0")

    def stubs(self):
        e = self.e
        for q, kt_, vt_ in ((3, 2, 1), (0, 3, 2)):
            self.lab(f"L_stubA{q}")
            e(f"s_add_u32 m0, s{self.sKdst}, {(kt_ & 3)*8192}")
            e(f"s_add_u32 s{self.sKs}, s{self.sW4k}, {kt_*16384}")
            for x in self.kdmas(self.sK, self.sKs):
                e(x)
            e(f"s_add_u32 m0, s{self.sVdst}, {(vt_ & 3)*8192}")
            e(f"s_add_u32 s{self.sKs}, s{self.sW4k}, {vt_*16384}")
            for x in self.vdmas(self.sV, self.sKs):
                e(x)
            e(f"s_branch L_stubA{q}_back")
        for q in (0, 1):
            self.lab(f"L_stubW{q}")
            e("s_waitcnt vmcnt(8)")
            if q == 1:
                e(f"s_mov_b32 s{self.sRamp}, 0")
            e(f"s_branch L_stubW{q}_back")

    def rare(self, q):
        e = self.e
        T, X = self.vT, self.vX
        pb = q & 1
        nb = pb ^ 1
        self.lab(f"L_rare{q}")
        e("s_nop 7")
        d, al = X, X + 1
        for qt in range(4):
            for y in self.maxchain(d, [self.Se(nb, 8 * qt + i) for i in range(8)]):
                e(y)
            self.cross("v_max_f32", d, T, T + 1)
            e(f"v_max_f32 v{d}, 0, v{d}")
            e(f"v_exp_f32 v{al}, -v{d}")
            for r in range(4):
                e(f"v_sub_f32 v{self.vNM+4*qt+r}, v{self.vNM+4*qt+r}, v{d}")
            for i in range(8):
                e(f"v_sub_f32 {self.Se(pb, 8*qt+i)}, {self.Se(pb, 8*qt+i)}, v{d}")
            e(f"v_mul_f32 v{self.vL+qt}, v{self.vL+qt}, v{al}")
            for r in range(32):
                if qt < 2:
                    o = f"v{self.vO0 + 32*qt + r}"
                    e(f"v_mul_f32 {o}, {o}, v{al}")
                else:
                    o = f"a{self.aO1 + 32*(qt-2) + r}"
                    e(f"v_accvgpr_read_b32 v{X+2}, {o}")
                    e(f"v_mul_f32 v{X+2}, v{X+2}, v{al}")
                    e(f"v_accvgpr_write_b32 {o}, v{X+2}")
            self.softmax_plain(nb, qt, nb, d)
            e("s_nop 1")
            e(self.summ(nb, qt))
        e("s_nop 7")
        e(f"s_branch L_back{q}")

    def epilogue(self):
        e = self.e
        T, X = self.vT, self.vX
        self.lab("L_epi")
        pb = 1
        self.rstamp(63)
        self.stamp(50)
        e(f"s_lshl_b32 s6, s{self.sW}, 14")
        e(f"v_lshlrev_b32 v{T+4}, 4, v0")
        e(f"v_add_u32 v{X}, s6, v{T+4}")
        e(f"v_xor_b32 v{X+1}, 0x8000, v{X}")
        e(f"s_lshl_b32 s6, s{self.sW}, 10")
        e(f"s_add_u32 s6, s6, {self.LDS_T}")
        e(f"v_add_u32 v{X+2}, s6, v{T+4}")
        e(f"v_xor_b32 v{X+3}, 0x800, v{X+2}")
        e(f"v_mov_b32 v{X+4}, v{self.vNM+8}")
        e(f"v_mov_b32 v{X+5}, v{self.vNM+12}")
        e(f"v_add_f32 v{X+6}, v{self.vL+2}, v{self.vTS+8}")
        e(f"v_add_f32 v{X+7}, v{self.vL+3}, v{self.vTS+12}")
        e(f"v_add_f32 v{self.vL}, v{self.vL}, v{self.vTS}")
        e(f"v_add_f32 v{self.vL+1}, v{self.vL+1}, v{self.vTS+4}")
        e("s_waitcnt vmcnt(0) lgkmcnt(0)")
        e("s_barrier")
        self.stamp(51)
        e(f"ds_write_b128 v{X+2}, v[{X+4}:{X+7}]")
        order = [(qt, dt) for qt in (2, 3, 0, 1) for dt in range(8)]
        wr = [f"ds_write_b128 v{X}, a[{self.aO1+4*i}:{self.aO1+4*i+3}] offset:{1024*i}" for i in range(16)]
        OA = self.vS
        addr = [
            f"s_lshl_b32 s6, s{self.sW}, 13",
            f"s_add_u32 s6, s6, {self.LDS_V}",
            f"v_and_b32 v{T}, 15, v0",
            f"v_lshrrev_b32 v{T+1}, 5, v0",
            f"v_xor_b32 v{T+1}, v{T+1}, v{T}",
            f"v_lshlrev_b32 v{T+2}, 8, v{T}",
            f"v_lshl_or_b32 v{T+1}, v{T+1}, 4, v{T+2}",
            f"v_bfe_u32 v{T+2}, v0, 4, 1",
            f"v_lshl_or_b32 v{T+1}, v{T+2}, 3, v{T+1}",
            f"v_add_u32 v{OA}, s6, v{T+1}",
        ] + [f"v_xor_b32 v{OA+dt}, {dt << 5}, v{OA}" for dt in range(1, 8)] \
          + [f"v_add_u32 v{OA+8+j}, s6, v{self.vKdma+j}" for j in range(4)] \
          + [f"s_add_u32 s7, s{self.sH0}, 4096"]
        for n, (qt, dt) in enumerate(order):
            e(self.pv(pb, qt, dt))
            if n < 11:
                for y in addr[2 * n: 2 * n + 2]:
                    e(y)
            if 10 <= n < 26:
                e(wr[n - 10])
        e("s_waitcnt lgkmcnt(0)")
        self.stamp(52)
        e("s_barrier")
        self.stamp(53)
        e(f"ds_read_b128 v[{X+4}:{X+7}], v{X+3}")
        R = self.vS + 32
        e(f"v_mov_b32 v{X+8}, v{self.vNM}")
        e(f"v_mov_b32 v{X+9}, v{self.vNM+4}")
        for i in range(14):
            e(f"ds_read_b128 v[{R+4*i}:{R+4*i+3}], v{X+1} offset:{1024*i}")
        e("s_waitcnt lgkmcnt(14)")
        for i in range(14, 16):
            e(f"ds_read_b128 v[{R+4*i}:{R+4*i+3}], v{X+1} offset:{1024*i}")
        CA, CB = X + 12, X + 16
        for qt in range(2):
            e(f"v_min_f32 v{T}, v{X+8+qt}, v{X+4+qt}")
            e(f"v_sub_f32 v{CA+2*qt}, v{T}, v{X+8+qt}")
            e(f"v_sub_f32 v{CB+2*qt}, v{T}, v{X+4+qt}")
            e(f"v_exp_f32 v{CA+2*qt}, v{CA+2*qt}")
            e(f"v_exp_f32 v{CB+2*qt}, v{CB+2*qt}")
            e("s_nop 0")
            e(f"v_mul_f32 v{T}, v{self.vL+qt}, v{CA+2*qt}")
            e(f"v_fma_f32 v{T}, v{X+6+qt}, v{CB+2*qt}, v{T}")
            e(f"v_rcp_f32 v{T}, v{T}")
            e("s_nop 0")
            e(f"v_mul_f32 v{CA+2*qt}, v{CA+2*qt}, v{T}")
            e(f"v_mul_f32 v{CB+2*qt}, v{CB+2*qt}, v{T}")
        for i in range(0, 64, 2):
            b = self.vO0 + i
            qt = i // 32
            e(f"v_pk_mul_f32 v[{b}:{b+1}], v[{b}:{b+1}], v[{CA+2*qt}:{CA+2*qt+1}] op_sel_hi:[1,0]")
        PK = self.vP
        for i4 in range(16):
            qt, dt = i4 // 8, i4 % 8
            e(f"s_waitcnt lgkmcnt({15 - i4})")
            for h in range(2):
                b = self.vO0 + 4 * i4 + 2 * h
                e(f"v_pk_fma_f32 v[{b}:{b+1}], v[{R+4*i4+2*h}:{R+4*i4+2*h+1}], v[{CB+2*qt}:{CB+2*qt+1}], v[{b}:{b+1}] op_sel_hi:[1,0,1]")
        self.stamp(54)
        for i4 in range(16):
            qt, dt = i4 // 8, i4 % 8
            b = self.vO0 + 4 * i4
            e(f"v_cvt_pk_bf16_f32 v{PK+2*i4}, v{b}, v{b+1}")
            e(f"v_cvt_pk_bf16_f32 v{PK+2*i4+1}, v{b+2}, v{b+3}")
            e(f"ds_write_b64 v{OA+dt}, v[{PK+2*i4}:{PK+2*i4+1}] offset:{4096*qt}")
        e("s_waitcnt lgkmcnt(0)")
        for j in range(8):
            e(f"ds_read_b128 v[{R+4*j}:{R+4*j+3}], v{OA+8+(j&3)} offset:{1024*j}")
        for j in range(8):
            e(f"s_waitcnt lgkmcnt({7-j})")
            so = self.sH0 if j < 4 else 7
            e(f"buffer_store_dwordx4 v[{R+4*j}:{R+4*j+3}], v{T+4}, {self.srd(self.sO)}, s{so} offen offset:{1024*(j&3)}")
        if self.diag:
            self.stamp(55)
            e("s_waitcnt vmcnt(0) lgkmcnt(0)")
            e("s_memtime s[80:81]")
            e("s_memrealtime s[86:87]")
            e("s_waitcnt lgkmcnt(0)")
            e("v_writelane_b32 v254, s80, 1")
            e("v_writelane_b32 v255, s86, 1")
            e("s_lshl_b32 s6, s2, 2")
            e(f"s_add_u32 s6, s6, s{self.sW}")
            e("s_lshl_b32 s6, s6, 9")
            e("s_add_u32 s84, s84, s6")
            e("s_addc_u32 s85, s85, 0")
            e("s_and_b32 s85, s85, 0xffff")
            e("s_mov_b32 s86, 512")
            e("s_mov_b32 s87, 0x00020000")
            e("v_lshlrev_b32 v1, 3, v0")
            e("buffer_store_dwordx2 v[254:255], v1, s[84:87], 0 offen")
        self.lab("L_end")
        e("s_endpgm")

    def build(self):
        k = NAME + "_kernel"
        self.prologue()
        pro = list(self.out)
        self.out.append(".p2align 6")
        for _ in range(self.align_pad):
            self.e("s_nop 0")
        its = []
        for q in range(4):
            n0 = len(self.out)
            self.iteration(q)
            its.append(self.out[n0:])
        n0 = len(self.out)
        self.epilogue()
        epi = self.out[n0:]
        self.stubs()
        rares = []
        for q in range(4):
            n0 = len(self.out)
            self.rare(q)
            rares.append(self.out[n0:])
        errs = []

        def upto_exit(lines):
            idx = [i for i, l in enumerate(lines) if "L_epi" in l][0]
            return lines[: idx + 1]

        def from3b(lines):
            idx = [i for i, l in enumerate(lines) if l.startswith("L_it3b")][0]
            return lines[idx:]

        errs += check(pro + from3b(its[3]) + its[0] + its[1] + its[2] + its[3] + its[0], "main")
        errs += check(its[1] + upto_exit(its[2]) + epi, "exit")
        for q in range(4):
            errs += check(its[q] + rares[q] + its[(q + 1) & 3], f"rare{q}")
        errs += check(its[2] + rares[2] + epi, "rare-exit")
        for x in errs:
            print("HAZARD", x, file=sys.stderr)
        text = HEADER + f"; @launch grid=(256,1,1) block=(256,1,1) lds={self.LDS_BYTES}\n"
        text += '.amdgcn_target "amdgcn-amd-amdhsa--gfx950"\n.text\n'
        text += f".globl {k}\n.p2align 8\n.type {k},@function\n{k}:\n"
        text += "\n".join(self.out) + "\n"
        text += f""".section .rodata,"a"
.p2align 6
.amdhsa_kernel {k}
  .amdhsa_next_free_vgpr 512
  .amdhsa_next_free_sgpr 96
  .amdhsa_accum_offset 256
  .amdhsa_group_segment_fixed_size 0
  .amdhsa_kernarg_size 72
  .amdhsa_user_sgpr_count 2
  .amdhsa_user_sgpr_kernarg_segment_ptr 1
  .amdhsa_system_sgpr_workgroup_id_x 1
.end_amdhsa_kernel
"""
        return text, errs


if __name__ == "__main__":
    import argparse
    ap = argparse.ArgumentParser()
    ap.add_argument("-o", default=f"cdna_kernels/{NAME}.s")
    ap.add_argument("--nont", action="store_true")
    ap.add_argument("--diag", type=int, default=0)
    ap.add_argument("--pad", type=int, default=0)
    ap.add_argument("--dma", default=None)
    ap.add_argument("--kg", default=None)
    ap.add_argument("--vg", default=None)
    ap.add_argument("--budget", type=float, default=8)
    ap.add_argument("--c_ds", type=float, default=4)
    ap.add_argument("--c_dma", type=float, default=8)
    ap.add_argument("--c_salu", type=float, default=4)
    ap.add_argument("--fb", type=int, default=4)
    ap.add_argument("--c_exp", type=float, default=8)
    ap.add_argument("--lag", type=int, default=2)
    ap.add_argument("--exp_end", type=int, default=54)
    ap.add_argument("--thr", type=int, default=14)
    for f in ("nodma", "nods", "novalu", "nomfma"):
        ap.add_argument("--" + f, action="store_true")
    a = ap.parse_args()
    L = lambda s: [int(x) for x in s.split(",")] if s else None
    g = Gen(nt=not a.nont, diag=a.diag, dma_gaps=L(a.dma), kread_gaps=L(a.kg), vread_gaps=L(a.vg), budget=a.budget,
            c_ds=a.c_ds, c_dma=a.c_dma, c_salu=a.c_salu, first_burst=a.fb, align_pad=a.pad, thr_log2=a.thr,
            nodma=a.nodma, nods=a.nods, novalu=a.novalu, nomfma=a.nomfma, c_exp=a.c_exp, lag=a.lag, exp_end=a.exp_end)
    text, errs = g.build()
    open(a.o, "w").write(text)
    print("wrote", a.o, len(text), "bytes;", len(errs), "hazard reports")
```

```python
import math
import struct
import sys

from hazard import check

NAME = "standalone__tree_speculative_verify_tree_attention_over_candidate_token_tree__sampling"

HEADER = """; Kernarg layout for this problem (72 bytes, ptrs only, base s[0:1]):
;   offset  16: d_in[2] v_cache  shape=(32, 4, 2048, 128) dtype=bfloat16 strides=(2097152, 524288, 256, 2) contiguous=True
;   offset  32: d_in[4] v_tree  shape=(32, 4, 32, 128) dtype=bfloat16 strides=(32768, 8192, 256, 2) contiguous=True
; grid=ceil(out_elems/256), lds=0). Harness parses it; keep it on one line.
"""

MF = "v_mfma_f32_16x16x32_bf16"


def f32hex(x):
    return "0x%08x" % struct.unpack("<I", struct.pack("<f", x))[0]


class Gen:
    def __init__(self, nt=True, diag=0, dma_gaps=None, kread_gaps=None, vread_gaps=None, budget=8.5,
                 c_ds=4, c_dma=8, c_salu=4, first_burst=4, align_pad=0, thr_log2=14, q_start=0,
                 nodma=False, nods=False, novalu=False, nomfma=False, c_exp=8, lag=2, exp_end=54, stpol="", pre_ticks=4, q_tick=2, m_tick=4, tail_cap=8):
        self.tail_cap = tail_cap
        self.pre_ticks, self.q_tick, self.m_tick = pre_ticks, q_tick, m_tick
        self.stpol = stpol
        self.exp_end = exp_end
        self.c_exp, self.lag = c_exp, lag
        self.nt, self.diag = nt, diag
        self.dma_gaps = dma_gaps or [4, 12, 20, 28, 38, 46, 54, 61]
        self.kread_gaps = kread_gaps or [0, 24]
        self.vread_gaps = vread_gaps or [8, 59]
        self.budget, self.c_ds, self.c_dma, self.c_salu = budget, c_ds, c_dma, c_salu
        self.first_burst, self.align_pad, self.thr_log2 = first_burst, align_pad, thr_log2
        self.q_start = q_start
        self.nodma, self.nods, self.novalu, self.nomfma = nodma, nods, novalu, nomfma
        self.out = []
        self.vKrd = 2
        self.vVrd = 6
        self.vKdma = 14
        self.vVdma = 18
        self.vL = 20
        self.vT = 24
        self.vS = 32
        self.vNM = 96
        self.vTS = 112
        self.vP = 128
        self.vO0 = 160
        self.vX = 224
        self.vOne = 248
        self.aO1, self.aQ, self.aK, self.aV = 0, 64, 128, 192
        self.sK, self.sV, self.sQ, self.sKT, self.sVT, self.sM, self.sO = 36, 40, 44, 48, 52, 56, 60
        self.sKoff, self.sVoff, self.sKdst, self.sVdst, self.sCnt, self.sThr, self.sC = 64, 65, 66, 67, 68, 69, 70
        self.sH0, self.sH1, self.sW, self.sW4k = 71, 72, 3, 73
        self.sKs, self.sVs, self.sRamp = 32, 33, 34
        self.LDS_V, self.LDS_T = 65536, 131072
        self.LDS_BYTES = 163840
        self.aM = 224
        self.sR4k = 74

    def e(self, s):
        self.out.append("    " + s)

    def lab(self, s):
        self.out.append(s + ":")

    def stamp(self, lane):
        if self.diag == 1 or (self.diag and lane >= 62):
            self.e("s_memtime s[80:81]")
            self.e("s_waitcnt lgkmcnt(0)")
            self.e(f"v_writelane_b32 v254, s80, {lane}")

    def rstamp(self, lane):
        if self.diag:
            self.e("s_memrealtime s[80:81]")
            self.e("s_waitcnt lgkmcnt(0)")
            self.e(f"v_writelane_b32 v255, s80, {lane}")
            self.stamp(lane)

    @staticmethod
    def r4(f, b):
        return f"{f}[{b}:{b+3}]"

    def S(self, buf, qt, kt):
        return self.r4("v", self.vS + 32 * buf + 8 * qt + 4 * kt)

    def Se(self, buf, i):
        return f"v{self.vS + 32 * buf + i}"

    def NM(self, qt):
        return self.r4("v", self.vNM + 4 * qt)

    def TS(self, qt):
        return self.r4("v", self.vTS + 4 * qt)

    def P(self, buf, qt):
        return self.r4("v", self.vP + 16 * buf + 4 * qt)

    def Pe(self, buf, i):
        return f"v{self.vP + 16 * buf + i}"

    def O(self, qt, dt):
        if qt < 2:
            return self.r4("v", self.vO0 + 32 * qt + 4 * dt)
        return self.r4("a", self.aO1 + 32 * (qt - 2) + 4 * dt)

    def Q(self, qt, ds):
        return self.r4("a", self.aQ + 16 * qt + 4 * ds)

    def Kf(self, kt, ds):
        return self.r4("a", self.aK + 16 * kt + 4 * ds)

    def Vf(self, dt):
        return self.r4("a", self.aV + 4 * dt)

    def srd(self, s):
        return f"s[{s}:{s+3}]"

    def dma(self, vreg, srd, soff, j):
        nt = " nt" if self.nt else ""
        return f"buffer_load_dwordx4 v{vreg}, {self.srd(srd)}, s{soff} offen offset:{1024*j}{nt} lds"

    def kdmas(self, srd, soff):
        return [self.dma(self.vKdma + j, srd, soff, j) for j in range(4)]

    def vdmas(self, srd, soff):
        return [self.dma(self.vVdma + (j & 1), srd, soff, j) for j in range(4)]

    def run_group(self, which):
        if which == "K":
            return ([f"s_add_u32 m0, s{self.sKdst}, s{self.sKs}"], self.kdmas(self.sK, self.sKoff),
                    [f"s_add_u32 s{self.sKoff}, s{self.sKoff}, 16384",
                     f"s_add_u32 s{self.sKs}, s{self.sKs}, 0x2000",
                     f"s_and_b32 s{self.sKs}, s{self.sKs}, 0x6000"])
        return ([f"s_add_u32 m0, s{self.sVdst}, s{self.sVs}"], self.vdmas(self.sV, self.sVoff),
                [f"s_add_u32 s{self.sVoff}, s{self.sVoff}, 16384",
                 f"s_add_u32 s{self.sVs}, s{self.sVs}, 0x2000",
                 f"s_and_b32 s{self.sVs}, s{self.sVs}, 0x6000"])

    def kreads(self, slot):
        return [f"ds_read_b128 {self.Kf(kt, ds)}, v{self.vKrd+ds} offset:{slot*8192 + kt*4096}"
                for kt in range(2) for ds in range(4)]

    def vreads(self, slot):
        out = []
        for dt in range(8):
            for e_ in range(2):
                b = self.aV + 4 * dt + 2 * e_
                out.append(f"ds_read_b64_tr_b16 a[{b}:{b+1}], v{self.vVrd+dt} offset:{slot*8192 + 4096*e_}")
        return out

    def qk_mfmas(self, sbuf, cinit=None, qts=range(4)):
        out = []
        for qt in qts:
            for kt in range(2):
                for ds in range(4):
                    c = (cinit if cinit is not None else self.NM(qt)) if ds == 0 else self.S(sbuf, qt, kt)
                    out.append(f"{MF} {self.S(sbuf, qt, kt)}, {self.Kf(kt, ds)}, {self.Q(qt, ds)}, {c}")
        return out

    def pv(self, pbuf, qt, dt):
        o = self.O(qt, dt)
        return f"{MF} {o}, {self.Vf(dt)}, {self.P(pbuf, qt)}, {o}"

    def summ(self, pbuf, qt):
        return f"{MF} {self.TS(qt)}, {self.r4('v', self.vOne)}, {self.P(pbuf, qt)}, 0"

    def cross(self, op, x, t0, t1):
        for sw in ("v_permlane16_swap_b32", "v_permlane32_swap_b32"):
            self.e(f"v_mov_b32 v{t0}, v{x}")
            self.e(f"v_mov_b32 v{t1}, v{x}")
            self.e("s_nop 1")
            self.e(f"{sw} v{t0}, v{t1}")
            self.e("s_nop 1")
            self.e(f"{op} v{x}, v{t0}, v{t1}")

    def maxchain(self, dst, regs, first=True):
        regs = list(regs)
        out = []
        if first:
            out.append(f"v_max3_f32 v{dst}, {regs[0]}, {regs[1]}, {regs[2]}")
            regs = regs[3:]
        while len(regs) >= 2:
            out.append(f"v_max3_f32 v{dst}, v{dst}, {regs[0]}, {regs[1]}")
            regs = regs[2:]
        if regs:
            out.append(f"v_max_f32 v{dst}, v{dst}, {regs[0]}")
        return out

    def softmax_plain(self, sbuf, qt, pbuf, sub_reg):
        T = self.vT
        for i in range(8):
            self.e(f"v_sub_f32 v{T+i}, {self.Se(sbuf, 8*qt+i)}, v{sub_reg}")
        for i in range(8):
            self.e(f"v_exp_f32 v{T+i}, v{T+i}")
        self.e("s_nop 0")
        for i in range(4):
            self.e(f"v_cvt_pk_bf16_f32 {self.Pe(pbuf, 4*qt+i)}, v{T+2*i}, v{T+2*i+1}")

    def prologue(self):
        e = self.e
        T, X = self.vT, self.vX
        e("s_cmp_ge_u32 s2, 256")
        e("s_cbranch_scc1 L_end")
        e("s_load_dwordx16 s[16:31], s[0:1], 0")
        if self.diag:
            e("s_load_dwordx2 s[84:85], s[0:1], 64")
            e("s_memtime s[80:81]")
            e("s_memrealtime s[86:87]")
            e("s_mov_b32 s90, 2")
            e("v_mov_b32 v254, 0")
            e("v_mov_b32 v255, 0")
        e("v_lshrrev_b32 v1, 6, v0")
        e("v_and_b32 v0, 63, v0")
        e(f"v_readfirstlane_b32 s{self.sW}, v1")
        e("s_and_b32 s6, s2, 7")
        e("s_lshr_b32 s7, s2, 3")
        e("s_and_b32 s5, s7, 1")
        e("s_lshr_b32 s7, s7, 1")
        e("s_lshl_b32 s7, s7, 3")
        e("s_or_b32 s4, s7, s6")
        e(f"v_and_b32 v{T}, 15, v0")
        e(f"v_lshrrev_b32 v{T+1}, 4, v0")
        e(f"v_lshlrev_b32 v{X+16}, 4, v0")
        e(f"v_lshlrev_b32 v{X+17}, 6, v{T}")
        e(f"v_lshl_or_b32 v{X+17}, v{T+1}, 3, v{X+17}")
        e(f"s_lshr_b32 s8, s{self.sW}, 1")
        e(f"s_and_b32 s9, s{self.sW}, 1")
        e("s_lshl_b32 s10, s8, 15")
        e("s_lshl_b32 s11, s9, 12")
        e(f"s_lshl_b32 s{self.sW4k}, s{self.sW}, 12")
        e("s_lshl_b32 s6, s4, 19")
        e("s_lshl_b32 s7, s4, 16")
        e("s_lshl_b32 s12, s5, 15")
        e("s_add_u32 s7, s7, s12")
        e("s_lshl_b32 s12, s4, 13")
        e("s_lshr_b32 s13, s4, 2")
        e("s_lshl_b32 s13, s13, 11")
        e(f"s_lshl_b32 s14, s{self.sW}, 13")
        e("s_add_u32 s15, s14, 4096")
        e(f"v_xor_b32 v{T+2}, v{T}, v{T+1}")
        e(f"v_lshlrev_b32 v{T+3}, 8, v{T+1}")
        e(f"v_lshl_or_b32 v{self.vKdma}, v{T+2}, 4, v{T+3}")
        for j in range(1, 4):
            e(f"v_xor_b32 v{self.vKdma+j}, {j << 6}, v{self.vKdma}")
        e(f"s_add_u32 s{self.sKdst}, s10, s11")
        e(f"s_add_u32 s{self.sVdst}, s{self.sKdst}, {self.LDS_V}")
        e(f"s_mov_b32 s{self.sKoff}, s{self.sW4k}")
        e(f"s_mov_b32 s{self.sVoff}, s{self.sW4k}")
        e("s_waitcnt lgkmcnt(0)")
        if self.diag:
            e("v_writelane_b32 v254, s80, 0")
            e("v_writelane_b32 v255, s86, 0")

        def mk(srd, ptr, off, size):
            e(f"s_add_u32 s{srd}, s{ptr}, s{off}")
            e(f"s_addc_u32 s{srd+1}, s{ptr+1}, 0")
            e(f"s_and_b32 s{srd+1}, s{srd+1}, 0xffff")
            e(f"s_mov_b32 s{srd+2}, {size}")
            e(f"s_mov_b32 s{srd+3}, 0x00020000")

        vm = [0]
        done = {}
        pend = []

        def add_group(tag, m0, dmas, post=()):
            for i, x in enumerate(dmas):
                pend.append((tag, [m0, "s_nop 0"] if i == 0 else [], x, list(post) if i == 3 else []))

        def tick(n=1):
            for _ in range(n):
                if not pend:
                    return
                tag, pre, x, post = pend.pop(0)
                for y in pre:
                    e(y)
                e(x)
                vm[0] += 1
                done[tag] = vm[0]
                for y in post:
                    e(y)

        def waitfor(tag, extra=""):
            assert not any(p[0] == tag for p in pend), tag
            e(f"s_waitcnt vmcnt({vm[0] - done[tag]}){extra}")

        self.stamp(40)
        mk(self.sM, 26, 13, 2048)
        for qt in range(2):
            for kt in range(2):
                bq = X + 8 + 4 * qt + 2 * kt
                pend.append(("M", [], f"buffer_load_dwordx2 v[{bq}:{bq+1}], v{X+17}, {self.srd(self.sM)}, 0 offen "
                             f"offset:{1024*qt + 32*kt}", []))
        tick(4)
        mk(self.sQ, 16, 7, 32768)
        for j in range(8):
            bq = self.vS + 4 * j
            pend.append((f"Q{j}", [], f"buffer_load_dwordx4 v[{bq}:{bq+3}], v{X+16}, {self.srd(self.sQ)}, "
                         f"s{14 + j // 4} offen offset:{1024*(j%4)}", []))
        tick(8)
        mk(self.sK, 18, 6, 524288)

        def kgrp(i):
            add_group(f"K{i}", f"s_add_u32 m0, s{self.sKdst}, {(i & 3)*8192}", self.kdmas(self.sK, self.sKoff),
                      [f"s_add_u32 s{self.sKoff}, s{self.sKoff}, 16384"])

        def vgrp(i):
            add_group(f"V{i}", f"s_add_u32 m0, s{self.sVdst}, {(i & 3)*8192}", self.vdmas(self.sV, self.sVoff),
                      [f"s_add_u32 s{self.sVoff}, s{self.sVoff}, 16384"])

        kgrp(0)
        tick(self.first_burst)
        self.stamp(41)
        mk(self.sV, 20, 6, 524288)
        mk(self.sKT, 22, 12, 8192)
        mk(self.sVT, 24, 12, 8192)
        mk(self.sO, 28, 7, 32768)
        e(f"v_lshlrev_b32 v{T+4}, 1, v{T+1}")
        e(f"v_xor_b32 v{T+4}, v{T}, v{T+4}")
        e(f"v_lshl_or_b32 v{self.vVdma}, v{T+4}, 4, v{T+3}")
        e(f"v_xor_b32 v{self.vVdma+1}, 0x80, v{self.vVdma}")
        kgrp(1)
        vgrp(0)
        kgrp(2)
        vgrp(1)
        kgrp(3)
        vgrp(2)
        e(f"v_lshlrev_b32 v{T+4}, 8, v{T}")
        e(f"v_lshl_or_b32 v{self.vKrd}, v{T+2}, 4, v{T+4}")
        e(f"v_add_u32 v{self.vKrd}, s10, v{self.vKrd}")
        for ds in range(1, 4):
            e(f"v_xor_b32 v{self.vKrd+ds}, {ds << 6}, v{self.vKrd}")
        e(f"v_lshrrev_b32 v{T+4}, 2, v0")
        e(f"v_and_b32 v{T+5}, 7, v{T+4}")
        e(f"v_lshlrev_b32 v{T+4}, 8, v{T+4}")
        e(f"v_lshl_or_b32 v{T+4}, v{T+5}, 5, v{T+4}")
        e(f"v_and_b32 v{T+5}, 3, v0")
        e(f"v_lshl_or_b32 v{T+4}, v{T+5}, 3, v{T+4}")
        e(f"s_add_u32 s14, s10, {self.LDS_V}")
        e(f"v_add_u32 v{self.vVrd}, s14, v{T+4}")
        for dt in range(1, 8):
            e(f"v_xor_b32 v{self.vVrd+dt}, {dt << 5}, v{self.vVrd}")
        e(f"s_mov_b32 s{self.sThr}, {f32hex(2.0**self.thr_log2)}")
        e(f"s_mov_b32 s{self.sCnt}, 0")
        e(f"s_mov_b32 s{self.sR4k}, s11")
        e("s_lshl_b32 s12, s9, 1")
        e("s_add_u32 s13, s12, s8")
        e(f"s_lshl_b32 s{self.sH0}, s13, 13")
        e("s_xor_b32 s13, s13, 1")
        e(f"s_lshl_b32 s{self.sH1}, s13, 13")
        QW = X + 18
        e(f"s_lshl_b32 s14, s{self.sW}, 13")
        e(f"s_add_u32 s14, s14, {self.LDS_T}")
        for j in range(4):
            e(f"v_add_u32 v{QW+j}, s14, v{self.vKdma+j}")
        QA = self.vP + 16
        e(f"s_sub_u32 s15, {self.LDS_T}, s10")
        for sub in range(2):
            e(f"s_add_u32 s14, s15, s{self.sH0 if sub == 0 else self.sH1}")
            for ds in range(4):
                e(f"v_add_u32 v{QA+4*sub+ds}, s14, v{self.vKrd+ds}")
        c = f32hex(128 ** -0.5 * math.log2(math.e))
        e(f"s_mov_b32 s14, {c}")
        e(f"s_mov_b32 s15, {c}")
        for r in range(64):
            e(f"v_mov_b32 v{self.vO0+r}, 0")
        tick(4 - self.first_burst)
        for r in range(64):
            e(f"v_accvgpr_write_b32 a{self.aO1+r}, 0")
        for r in range(4):
            e(f"v_mov_b32 v{self.vL+r}, 0")
            e(f"v_mov_b32 v{self.vOne+r}, 0x3f803f80")
        e(f"s_mov_b32 s12, {f32hex(-1e9)}")
        e(f"s_mov_b32 s13, {f32hex(math.log2(math.e))}")
        waitfor("M")
        for i in range(8):
            t0, t1 = T + 2 * (i % 2), T + 2 * (i % 2) + 1
            e(f"v_lshlrev_b32 v{t0}, 16, v{X+8+i}")
            e(f"v_and_b32 v{t1}, 0xffff0000, v{X+8+i}")
            for k_, t_ in enumerate((t0, t1)):
                e(f"v_sub_f32 v{t_}, 1.0, v{t_}")
                e(f"v_mul_f32 v{t_}, s12, v{t_}")
                e(f"v_mul_f32 v{X+2*i+k_}, s13, v{t_}")
        tick(self.pre_ticks)
        self.stamp(43)
        for j in range(8):
            waitfor(f"Q{j}")
            if j == 0:
                self.stamp(44)
            for i in range(4):
                src = self.vS + 4 * j + i
                t0 = T + 2 * (i % 3)
                e(f"v_lshlrev_b32 v{t0}, 16, v{src}")
                e(f"v_and_b32 v{t0+1}, 0xffff0000, v{src}")
                e(f"v_pk_mul_f32 v[{t0}:{t0+1}], v[{t0}:{t0+1}], s[14:15]")
                e(f"v_cvt_pk_bf16_f32 v{src}, v{t0}, v{t0+1}")
            bq = self.vS + 4 * j
            e(f"ds_write_b128 v{QW+(j&3)}, v[{bq}:{bq+3}] offset:{1024*j}")
            if j % self.q_tick == self.q_tick - 1:
                tick(1)
        self.stamp(45)
        waitfor("K0", " lgkmcnt(0)")
        self.stamp(47)
        e("s_barrier")
        self.stamp(48)
        kr0 = self.kreads(0)
        qr = [f"ds_read_b128 {self.Q(qt, ds)}, v{QA+4*(qt>>1)+ds} offset:{4096*(qt&1)}" for qt in range(4) for ds in range(4)]
        reads = qr[0:4] + kr0 + qr[4:]
        need = {0: 8, 4: 12, 8: 16, 16: 20, 24: 24}
        for x in reads[:14]:
            e(x)
        issued = 14
        mx = [self.vP + 24 + qt for qt in range(4)]
        mxl = [self.maxchain(mx[qt], [self.Se(0, 8 * qt + i) for i in range(8)]) for qt in range(4)]
        for i, x in enumerate(self.qk_mfmas(0, cinit="0")):
            if i in need:
                e(f"s_waitcnt lgkmcnt({issued - need[i]})")
            e(x)
            if issued < len(reads):
                e(reads[issued])
                issued += 1
            if i >= 16 and i % 8 in (4, 5):
                qt = i // 8 - 2
                for y in mxl[qt][2 * (i % 8 - 4): 2 * (i % 8 - 4) + 2]:
                    e(y)
            if i % self.m_tick == 1:
                tick(1)
        self.stamp(49)

        def rebase(qt):
            self.cross("v_max_f32", mx[qt], T, T + 1)
            for r in range(4):
                e(f"v_sub_f32 v{self.vNM+4*qt+r}, 0, v{mx[qt]}")
            for i in range(8):
                e(f"v_sub_f32 {self.Se(0, 8*qt+i)}, {self.Se(0, 8*qt+i)}, v{mx[qt]}")
            tick(1)

        rebase(0)
        rebase(1)
        while any(p[0] in ("K1", "V0") for p in pend):
            tick(1)
        waitfor("V0")
        e("s_barrier")
        self.stamp(56)
        for x in self.kreads(1):
            e(x)
        for qt in (2, 3):
            for y in mxl[qt]:
                e(y)
            rebase(qt)
        kgrp(4)
        vgrp(3)
        e("s_waitcnt lgkmcnt(0)")
        qk1 = self.qk_mfmas(1)
        v0 = self.vreads(0)
        sm = []
        for i in range(32 + 2):
            if i < 32:
                sm.append([f"v_exp_f32 v{T + (i % 8)}, {self.Se(0, i)}"])
            k = i - 2
            if k >= 0 and k % 2 == 1:
                sm.append([v0[k >> 1], f"v_cvt_pk_bf16_f32 {self.Pe(0, k >> 1)}, v{T + ((k-1) % 8)}, v{T + (k % 8)}"])
        nsum = 0
        ncvt = 0
        ready = []
        for i in range(len(sm)):
            if i < len(qk1):
                e(qk1[i])
            elif nsum < len(ready) and ready[nsum] + 2 <= i:
                e(self.summ(0, nsum))
                nsum += 1
            for y in sm[i]:
                e(y)
                if "v_cvt" in y:
                    ncvt += 1
                    if ncvt % 4 == 0:
                        ready.append(i)
            if i % self.m_tick == 3:
                tick(1)
        e("s_nop 1")
        while nsum < 4:
            e(self.summ(0, nsum))
            nsum += 1
        tick(100)
        self.rstamp(62)
        e("s_branch L_it0")

    def iteration(self, q):
        e = self.e
        T = self.vT
        pb = q & 1
        nb = pb ^ 1
        NG = 64
        cap = self.budget
        sm = []
        for qt in range(4):
            sm.append((4, f"v_add_f32 v{self.vL+qt}, v{self.vL+qt}, v{self.vTS+4*qt}", None))
        lag = self.lag
        for i in range(32 + lag):
            if i < 32:
                sm.append((self.c_exp, f"v_exp_f32 v{T + (i % 8)}, {self.Se(nb, i)}", None))
            k = i - lag
            if 0 <= k < 32 and k & 1:
                sm.append((4, f"v_cvt_pk_bf16_f32 {self.Pe(nb, k >> 1)}, v{T + ((k-1) % 8)}, v{T + (k % 8)}",
                           (k >> 3) if k % 8 == 7 else None))
        kr = [(self.c_ds, x) for x in self.kreads((q + 2) & 3)]
        vr = [(self.c_ds, x) for x in self.vreads((q + 1) & 3)]
        dm = []
        dg = self.dma_gaps
        for gi, which in enumerate("KV"):
            if which == "K":
                m0 = f"s_add_u32 m0, s{self.sKdst}, {((q+1)&3)*8192}"
                d = self.kdmas(self.sK, self.sKoff)
                adv = f"s_add_u32 s{self.sKoff}, s{self.sKoff}, 16384"
            else:
                m0 = f"s_add_u32 m0, s{self.sVdst}, {(q&3)*8192}"
                d = self.vdmas(self.sV, self.sVoff)
                adv = f"s_add_u32 s{self.sVoff}, s{self.sVoff}, 16384"
            if (q, which) in ((3, "K"), (0, "V")):
                dm.append((dg[4 * gi] - 3, 2 * self.c_salu,
                           [f"s_cmp_eq_u32 s{self.sCnt}, 7", f"s_cbranch_scc1 L_stub{which}", f"L_stub{which}_back:"]))
            dm.append((dg[4 * gi] - 1, self.c_salu, [m0]))
            for j in range(4):
                dm.append((dg[4 * gi + j], self.c_dma, [d[j]]))
            dm.append((dg[4 * gi + 3] + 1, self.c_salu, [adv]))
        fill = [[] for _ in range(NG)]
        sums = []
        last_sum_gap = None
        lastm0 = None
        exps = [f"v_exp_f32 v{T + (i % 8)}, {self.Se(nb, i)}" for i in range(32)]
        cvts = [f"v_cvt_pk_bf16_f32 {self.Pe(nb, k)}, v{T + ((2*k) % 8)}, v{T + ((2*k+1) % 8)}" for k in range(16)]
        ladd = [f"v_add_f32 v{self.vL+qt}, v{self.vL+qt}, v{self.vTS+4*qt}" for qt in range(4)]
        krl = [x for _, x in kr]
        vrl = [x for _, x in vr]
        ne = nc = nk = nv = 0
        exp_slot = {}
        slot = 0
        exp_end, k_end, v_end = self.exp_end, self.kread_gaps[-1], self.vread_gaps[-1]
        v_first = self.vread_gaps[0]
        last_ds2 = -9
        for g in range(NG):
            subs = 2 if (sums and sums[0][0] <= g) else 1
            for sub in range(subs):
                if sub == 1:
                    fill[g].append(sums.pop(0)[1])
                    last_sum_gap = g
                slot += 1
                b = 8
                free_salu = g != 31

                def valu_ready():
                    n = len(ladd)
                    ncv = nc
                    while ncv < 16 and 2 * ncv + 1 < ne and exp_slot[2 * ncv + 1] < slot:
                        n += 1
                        ncv += 1
                    return n

                def place_valu():
                    nonlocal nc
                    if ladd:
                        fill[g].append(ladd.pop(0))
                    else:
                        fill[g].append(cvts[nc])
                        if nc % 4 == 3:
                            sums.append((g + 2, self.summ(nb, nc // 4)))
                        nc += 1

                def ds_next():
                    kavail = nk < 8
                    vavail = nv < 16 and g >= max(v_first, 4 * (nv // 2) + 4)
                    kdue = kavail and nk < (g + 1) * 8 / (k_end + 1)
                    vdue = vavail and nv < (g - v_first + 1) * 16 / (v_end - v_first + 1)
                    if kdue:
                        return "k", True
                    if vdue:
                        return "v", True
                    if kavail:
                        return "k", False
                    if vavail:
                        return "v", False
                    return None, False

                def place_ds(kind):
                    nonlocal nk, nv
                    if kind == "k":
                        fill[g].append(krl[nk])
                        nk += 1
                    else:
                        fill[g].append(vrl[nv])
                        nv += 1

                while dm and dm[0][0] <= g:
                    ins = dm[0][2]
                    if " lds" in ins[0]:
                        if lastm0 == slot or b < 8:
                            break
                        b = 0
                    else:
                        n_s = len([x for x in ins if not x.endswith(":")])
                        cost = 4 * (n_s - (1 if free_salu else 0))
                        if cost > b or (not free_salu and b < 8):
                            break
                        b -= cost
                        free_salu = False
                        if "m0" in ins[0]:
                            lastm0 = slot
                    fill[g] += ins
                    dm.pop(0)
                if b == 0:
                    continue
                nval = valu_ready()
                kind, due = ds_next()
                exp_ok = ne < 32 and (ne < 8 or (ne - 8) // 2 < nc) and b >= 8
                behind = ne < (g + 1) * 32 / (exp_end + 1)
                pair_ok = (nval >= 1 and kind is not None) or nval >= 2
                late_ds = due and ((kind == "k" and g >= k_end - 2 * (8 - nk)) or (kind == "v" and g >= v_end - (16 - nv) // 2))
                if exp_ok and (behind or not pair_ok) and not late_ds and not (pair_ok and due and not behind):
                    fill[g].append(exps[ne])
                    exp_slot[ne] = slot
                    ne += 1
                    continue
                if kind is not None and (due or nval < 2):
                    place_ds(kind)
                    b -= 4
                    if b >= 4:
                        if valu_ready():
                            place_valu()
                        else:
                            k2, d2 = ds_next()
                            if k2 == "v" and kind == "v" and (slot - last_ds2 >= 2 or ne == 32):
                                place_ds(k2)
                                last_ds2 = slot
                elif nval:
                    place_valu()
                    b -= 4
                    if b >= 4 and valu_ready():
                        place_valu()
                elif exp_ok:
                    fill[g].append(exps[ne])
                    exp_slot[ne] = slot
                    ne += 1
        assert not dm and nk == 8 and nv == 16, (len(dm), nk, nv)
        assert ne == 32 and nc == 16 and not sums, ("softmax does not fit", ne, nc, len(sums))
        tail = []
        if q == 0:
            print("sched: last sum at gap", last_sum_gap, "left over", len(tail), [len(f) for f in fill], file=sys.stderr)
        check_ins = [f"v_max3_f32 v{T}, v{self.vTS}, v{self.vTS+4}, v{self.vTS+8}",
                     f"v_max_f32 v{T}, v{T}, v{self.vTS+12}",
                     f"v_cmp_lt_f32 vcc, s{self.sThr}, v{T}"]
        mf = [self.pv(pb, qt, dt) for dt in range(8) for qt in range(4)] + self.qk_mfmas(pb)
        self.lab(f"L_it{q}")
        if self.diag == 1:
            e("s_memtime s[80:81]")
        e("s_waitcnt vmcnt(16) lgkmcnt(0)")
        e("s_barrier")
        if self.diag == 1:
            e("s_memtime s[82:83]")
            e("v_cmp_eq_u32 s[92:93], s90, v0")
            e("v_mov_b32 v253, s80")
            e("s_nop 1")
            e("v_cndmask_b32 v254, v254, v253, s[92:93]")
        for i in range(NG):
            if i == 32:
                nv_after = 0
                for l in reversed(self.out):
                    if "ds_read_b128" in l:
                        break
                    if "ds_read_b64_tr" in l:
                        nv_after += 1
                e(f"s_waitcnt lgkmcnt({min(15, nv_after) if self.diag != 1 else 0})")
                if self.diag == 1:
                    e("v_mov_b32 v253, s82")
                    e("v_cndmask_b32 v255, v255, v253, s[92:93]")
                    e("s_add_u32 s90, s90, 1")
            if not self.nomfma:
                e(mf[i])
            for x in fill[i]:
                if x.endswith(":"):
                    self.out.append(x)
                    continue
                if self.nodma and " lds" in x:
                    continue
                if self.nods and x.startswith("ds_"):
                    continue
                if self.novalu and x.startswith("v_") and not x.startswith("v_mfma"):
                    continue
                if self.nomfma and x.startswith("v_mfma"):
                    continue
                e(x)
        for x in tail:
            if x.startswith("v_mfma"):
                e("s_nop 1")
            e(x)
        n_after = 0
        for l in reversed(self.out):
            if MF in l and f" {self.TS(3)}," in l:
                break
            if not l.endswith(":"):
                n_after += 1
        if n_after < 8:
            e(f"s_nop {8 - n_after - 1}")
        for x in check_ins:
            e(x)
        if not (self.novalu or self.nomfma or self.nods or self.nodma):
            e(f"s_cbranch_vccnz L_rare{q}")
        self.lab(f"L_back{q}")
        if q == 2:
            e(f"s_add_u32 s{self.sCnt}, s{self.sCnt}, 1")
            e(f"s_cmp_eq_u32 s{self.sCnt}, 8")
            e("s_cbranch_scc1 L_epi")
        if q == 3:
            e("s_branch L_it0")

    def stubs(self):
        e = self.e
        for which, srd, tsrd, off in (("K", self.sK, self.sKT, self.sKoff), ("V", self.sV, self.sVT, self.sVoff)):
            self.lab(f"L_stub{which}")
            for i in range(3):
                e(f"s_mov_b32 s{srd+i}, s{tsrd+i}")
            e(f"s_mov_b32 s{off}, s{self.sR4k}")
            e(f"s_branch L_stub{which}_back")

    def rare(self, q):
        e = self.e
        T, X = self.vT, self.vX + 20
        tailv = q == "T"
        pb = 1 if tailv else q & 1
        nb = pb ^ 1
        self.lab(f"L_rare{q}")
        e("s_nop 7")
        d, al = X, X + 1
        for qt in range(2 if tailv else 4):
            for y in self.maxchain(d, [self.Se(nb, 8 * qt + i) for i in range(8)]):
                e(y)
            self.cross("v_max_f32", d, T, T + 1)
            e(f"v_max_f32 v{d}, 0, v{d}")
            e(f"v_exp_f32 v{al}, -v{d}")
            for r in range(4):
                e(f"v_sub_f32 v{self.vNM+4*qt+r}, v{self.vNM+4*qt+r}, v{d}")
            for i in range(0 if tailv else 8):
                e(f"v_sub_f32 {self.Se(pb, 8*qt+i)}, {self.Se(pb, 8*qt+i)}, v{d}")
            e(f"v_mul_f32 v{self.vL+qt}, v{self.vL+qt}, v{al}")
            for r in range(32):
                if qt < 2:
                    o = f"v{self.vO0 + 32*qt + r}"
                    e(f"v_mul_f32 {o}, {o}, v{al}")
                else:
                    o = f"a{self.aO1 + 32*(qt-2) + r}"
                    e(f"v_accvgpr_read_b32 v{X+2}, {o}")
                    e(f"v_mul_f32 v{X+2}, v{X+2}, v{al}")
                    e(f"v_accvgpr_write_b32 {o}, v{X+2}")
            self.softmax_plain(nb, qt, nb, d)
            e("s_nop 1")
            e(self.summ(nb, qt))
        e("s_nop 7")
        e(f"s_branch L_back{q}")

    def epilogue(self):
        e = self.e
        T, X = self.vT, self.vX
        self.lab("L_epi")
        pb = 1
        self.rstamp(63)
        self.stamp(50)
        LN = X + 23
        e("s_waitcnt vmcnt(0) lgkmcnt(0)")
        e("s_barrier")
        self.stamp(51)
        OA = self.vS + 16
        misc = [
            f"v_add_f32 v{self.vL+qt}, v{self.vL+qt}, v{self.vTS+4*qt}" for qt in range(4)
        ]
        bias = [f"v_add_f32 {self.Se(0, i)}, {self.Se(0, i)}, v{X+i}" for i in range(16)]
        WA, PA, SA, SP = self.vS + 28, self.vS + 29, self.vS + 30, self.vS + 31
        v32 = []
        for dt in range(8):
            for e_ in range(2):
                bq = self.aK + 4 * dt + 2 * e_
                v32.append(f"ds_read_b64_tr_b16 a[{bq}:{bq+1}], v{self.vVrd+dt} offset:{4096*e_}")
        smx = []
        for i in range(16 + 2):
            if i < 16:
                smx.append(f"v_exp_f32 v{T + (i % 8)}, {self.Se(0, i)}")
            k = i - 2
            if k >= 0 and k & 1:
                smx.append(f"v_cvt_pk_bf16_f32 {self.Pe(0, k >> 1)}, v{T + ((k-1) % 8)}, v{T + (k % 8)}")
        addr = [
            f"s_lshl_b32 s6, s{self.sW}, 14",
            f"v_lshlrev_b32 v{LN}, 4, v0",
            f"v_add_u32 v{WA}, s6, v{LN}",
        ]
        addr_late = [
            f"v_xor_b32 v{PA}, 0x8000, v{WA}",
            f"s_lshl_b32 s6, s{self.sW}, 10",
            f"s_add_u32 s6, s6, {self.LDS_T}",
            f"v_add_u32 v{SA}, s6, v{LN}",
            f"v_xor_b32 v{SP}, 0x800, v{SA}",
            f"v_mov_b32 v{X+16}, v{self.vNM+8}",
            f"v_mov_b32 v{X+17}, v{self.vNM+12}",
            f"v_mov_b32 v{X+18}, v{self.vL+2}",
            f"v_mov_b32 v{X+19}, v{self.vL+3}",
            f"ds_write_b128 v{SA}, v[{X+16}:{X+19}]",
        ]
        wr = [f"ds_write_b128 v{WA}, a[{self.aO1+4*i}:{self.aO1+4*i+3}] offset:{1024*i}" for i in range(16)]
        stream = bias[:8] + smx[:2] + bias[8:] + misc + addr + smx[2:]
        order = [(qt, dt) for qt in (2, 3, 0, 1) for dt in range(8)]
        si = 0
        nw = 0
        for n, (qt, dt) in enumerate(order):
            e(self.pv(pb, qt, dt))
            if n < 16:
                e(v32[n])
            cost = 0
            if n >= 16 and n % 2 == 0:
                e(wr[nw])
                nw += 1
                cost = 4
            while si < len(stream) and cost < self.tail_cap:
                e(stream[si])
                cost += 8 if "v_exp" in stream[si] else 4
                si += 1
        for y in stream[si:]:
            e(y)
        e("s_nop 1")
        e(self.summ(0, 0))
        e(self.summ(0, 1))
        for y in addr_late:
            e(y)
        e(f"v_max_f32 v{T}, v{self.vTS}, v{self.vTS+4}")
        e(f"v_cmp_lt_f32 vcc, s{self.sThr}, v{T}")
        e("s_waitcnt lgkmcnt(4)")
        e("s_cbranch_vccnz L_rareT")
        self.lab("L_backT")
        addr2 = [
            f"v_add_f32 v{self.vL}, v{self.vL}, v{self.vTS}",
            f"v_add_f32 v{self.vL+1}, v{self.vL+1}, v{self.vTS+4}",
            f"s_lshl_b32 s6, s{self.sW}, 13",
            f"s_add_u32 s6, s6, {self.LDS_V}",
            f"v_and_b32 v{T}, 15, v0",
            f"v_lshrrev_b32 v{T+1}, 5, v0",
            f"v_xor_b32 v{T+1}, v{T+1}, v{T}",
            f"v_lshlrev_b32 v{T+2}, 8, v{T}",
            f"v_lshl_or_b32 v{T+1}, v{T+1}, 4, v{T+2}",
            f"v_bfe_u32 v{T+2}, v0, 4, 1",
            f"v_lshl_or_b32 v{T+1}, v{T+2}, 3, v{T+1}",
            f"v_add_u32 v{OA}, s6, v{T+1}",
        ] + [f"v_xor_b32 v{OA+dt}, {dt << 5}, v{OA}" for dt in range(1, 8)] \
          + [f"v_add_u32 v{OA+8+j}, s6, v{self.vKdma+j}" for j in range(4)] \
          + [f"s_add_u32 s7, s{self.sH0}, 4096"]
        for n in range(16):
            qt, dt = n // 8, n % 8
            o = self.O(qt, dt)
            e(f"{MF} {o}, {self.r4('a', self.aK + 4*dt)}, {self.P(0, qt)}, {o}")
            if nw < 16 and n < 8:
                e(wr[nw])
                nw += 1
            for y in addr2[2 * n: 2 * n + 2]:
                e(y)
        assert nw == 16
        e("s_waitcnt lgkmcnt(0)")
        self.stamp(52)
        e("s_barrier")
        self.stamp(53)
        e(f"ds_read_b128 v[{X+4}:{X+7}], v{SP}")
        R = self.vS + 32
        e(f"v_mov_b32 v{X+8}, v{self.vNM}")
        e(f"v_mov_b32 v{X+9}, v{self.vNM+4}")
        for i in range(14):
            e(f"ds_read_b128 v[{R+4*i}:{R+4*i+3}], v{PA} offset:{1024*i}")
        e("s_waitcnt lgkmcnt(14)")
        for i in range(14, 16):
            e(f"ds_read_b128 v[{R+4*i}:{R+4*i+3}], v{PA} offset:{1024*i}")
        CA, CB = X + 12, X + 16
        for qt in range(2):
            e(f"v_min_f32 v{T+qt}, v{X+8+qt}, v{X+4+qt}")
            e(f"v_sub_f32 v{CA+2*qt}, v{T+qt}, v{X+8+qt}")
            e(f"v_sub_f32 v{CB+2*qt}, v{T+qt}, v{X+4+qt}")
        for qt in range(2):
            e(f"v_exp_f32 v{CA+2*qt}, v{CA+2*qt}")
            e(f"v_exp_f32 v{CB+2*qt}, v{CB+2*qt}")
        for qt in range(2):
            e(f"v_mul_f32 v{T+qt}, v{self.vL+qt}, v{CA+2*qt}")
        for qt in range(2):
            e(f"v_fma_f32 v{T+qt}, v{X+6+qt}, v{CB+2*qt}, v{T+qt}")
        for qt in range(2):
            e(f"v_rcp_f32 v{T+qt}, v{T+qt}")
        e("s_nop 0")
        for qt in range(2):
            e(f"v_mul_f32 v{CA+2*qt}, v{CA+2*qt}, v{T+qt}")
            e(f"v_mul_f32 v{CB+2*qt}, v{CB+2*qt}, v{T+qt}")
        PK = self.vP
        R2 = self.vP
        lds_seq = ["r%d" % i for i in range(16)]

        def wait_lds(tag):
            idx = lds_seq.index(tag)
            n = len(lds_seq) - 1 - idx
            e(f"s_waitcnt lgkmcnt({min(n, 15)})")
            del lds_seq[: idx + 1]

        for qt in range(2):
            for dt in range(8):
                i4 = 8 * qt + dt
                b_ = self.vO0 + 4 * i4
                for h in range(2):
                    e(f"v_pk_mul_f32 v[{b_+2*h}:{b_+2*h+1}], v[{b_+2*h}:{b_+2*h+1}], v[{CA+2*qt}:{CA+2*qt+1}] op_sel_hi:[1,0]")
                if f"r{i4}" in lds_seq:
                    wait_lds(f"r{i4}")
                for h in range(2):
                    e(f"v_pk_fma_f32 v[{b_+2*h}:{b_+2*h+1}], v[{R+4*i4+2*h}:{R+4*i4+2*h+1}], v[{CB+2*qt}:{CB+2*qt+1}], "
                      f"v[{b_+2*h}:{b_+2*h+1}] op_sel_hi:[1,0,1]")
                e(f"v_cvt_pk_bf16_f32 v{PK+2*i4}, v{b_}, v{b_+1}")
                e(f"v_cvt_pk_bf16_f32 v{PK+2*i4+1}, v{b_+2}, v{b_+3}")
                e(f"ds_write_b64 v{OA+dt}, v[{PK+2*i4}:{PK+2*i4+1}] offset:{4096*qt}")
                lds_seq.append(f"w{i4}")
                if qt == 1 and dt == 1:
                    for j in range(4):
                        rb = self.vO0 + 4 * j
                        e(f"ds_read_b128 v[{rb}:{rb+3}], v{OA+8+j} offset:{1024*j}")
                        lds_seq.append(f"b{j}")
                if qt == 1 and dt >= 4:
                    j = dt - 4
                    wait_lds(f"b{j}")
                    rb = self.vO0 + 4 * j
                    e(f"buffer_store_dwordx4 v[{rb}:{rb+3}], v{LN}, {self.srd(self.sO)}, s{self.sH0} offen offset:{1024*j}{self.stpol}")
        self.stamp(54)
        for j in range(4, 8):
            rb = self.vO0 + 4 * j
            e(f"ds_read_b128 v[{rb}:{rb+3}], v{OA+8+(j&3)} offset:{1024*j}")
        for j in range(4, 8):
            e(f"s_waitcnt lgkmcnt({7-j})")
            rb = self.vO0 + 4 * j
            e(f"buffer_store_dwordx4 v[{rb}:{rb+3}], v{LN}, {self.srd(self.sO)}, s7 offen offset:{1024*(j&3)}{self.stpol}")
        if self.diag:
            self.stamp(55)
            e("s_waitcnt vmcnt(0) lgkmcnt(0)")
            e("s_memtime s[80:81]")
            e("s_memrealtime s[86:87]")
            e("s_waitcnt lgkmcnt(0)")
            e("v_writelane_b32 v254, s80, 1")
            e("v_writelane_b32 v255, s86, 1")
            e("s_lshl_b32 s6, s2, 2")
            e(f"s_add_u32 s6, s6, s{self.sW}")
            e("s_lshl_b32 s6, s6, 9")
            e("s_add_u32 s84, s84, s6")
            e("s_addc_u32 s85, s85, 0")
            e("s_and_b32 s85, s85, 0xffff")
            e("s_mov_b32 s86, 512")
            e("s_mov_b32 s87, 0x00020000")
            e("v_lshlrev_b32 v1, 3, v0")
            e("buffer_store_dwordx2 v[254:255], v1, s[84:87], 0 offen")
        self.lab("L_end")
        e("s_endpgm")

    def build(self):
        k = NAME + "_kernel"
        self.prologue()
        pro = list(self.out)
        self.out.append(".p2align 6")
        for _ in range(self.align_pad):
            self.e("s_nop 0")
        its = []
        for q in range(4):
            n0 = len(self.out)
            self.iteration(q)
            its.append(self.out[n0:])
        n0 = len(self.out)
        self.epilogue()
        epi = self.out[n0:]
        self.stubs()
        rares = []
        for q in (0, 1, 2, 3, "T"):
            n0 = len(self.out)
            self.rare(q)
            rares.append(self.out[n0:])
        errs = []

        def upto_exit(lines):
            idx = [i for i, l in enumerate(lines) if "L_epi" in l][0]
            return lines[: idx + 1]

        def from3b(lines):
            idx = [i for i, l in enumerate(lines) if l.startswith("L_it3b")][0]
            return lines[idx:]

        errs += check(pro + its[0] + its[1] + its[2] + its[3] + its[0], "main")
        ib = [i for i, l in enumerate(epi) if l.startswith("L_backT")][0]
        errs += check(epi[:ib] + rares[4] + epi[ib:], "rareT")
        errs += check(its[1] + upto_exit(its[2]) + epi, "exit")
        for q in range(4):
            errs += check(its[q] + rares[q] + its[(q + 1) & 3], f"rare{q}")
        errs += check(its[2] + rares[2] + epi, "rare-exit")
        for x in errs:
            print("HAZARD", x, file=sys.stderr)
        text = HEADER + f"; @launch grid=(256,1,1) block=(256,1,1) lds={self.LDS_BYTES}\n"
        text += '.amdgcn_target "amdgcn-amd-amdhsa--gfx950"\n.text\n'
        text += f".globl {k}\n.p2align 8\n.type {k},@function\n{k}:\n"
        text += "\n".join(self.out) + "\n"
        text += f""".section .rodata,"a"
.p2align 6
.amdhsa_kernel {k}
  .amdhsa_next_free_vgpr 512
  .amdhsa_next_free_sgpr 96
  .amdhsa_accum_offset 256
  .amdhsa_group_segment_fixed_size 0
  .amdhsa_kernarg_size 72
  .amdhsa_user_sgpr_count 2
  .amdhsa_user_sgpr_kernarg_segment_ptr 1
  .amdhsa_system_sgpr_workgroup_id_x 1
.end_amdhsa_kernel
"""
        return text, errs


if __name__ == "__main__":
    import argparse
    ap = argparse.ArgumentParser()
    ap.add_argument("-o", default=f"cdna_kernels/{NAME}.s")
    ap.add_argument("--nont", action="store_true")
    ap.add_argument("--diag", type=int, default=0)
    ap.add_argument("--pad", type=int, default=0)
    ap.add_argument("--dma", default=None)
    ap.add_argument("--kg", default=None)
    ap.add_argument("--vg", default=None)
    ap.add_argument("--budget", type=float, default=8)
    ap.add_argument("--c_ds", type=float, default=4)
    ap.add_argument("--c_dma", type=float, default=8)
    ap.add_argument("--c_salu", type=float, default=4)
    ap.add_argument("--fb", type=int, default=4)
    ap.add_argument("--c_exp", type=float, default=8)
    ap.add_argument("--lag", type=int, default=2)
    ap.add_argument("--exp_end", type=int, default=54)
    ap.add_argument("--stpol", default="sc0+sc1")
    ap.add_argument("--pre_ticks", type=int, default=4)
    ap.add_argument("--q_tick", type=int, default=2)
    ap.add_argument("--m_tick", type=int, default=4)
    ap.add_argument("--thr", type=int, default=14)
    for f in ("nodma", "nods", "novalu", "nomfma"):
        ap.add_argument("--" + f, action="store_true")
    a = ap.parse_args()
    L = lambda s: [int(x) for x in s.split(",")] if s else None
    g = Gen(nt=not a.nont, diag=a.diag, dma_gaps=L(a.dma), kread_gaps=L(a.kg), vread_gaps=L(a.vg), budget=a.budget,
            c_ds=a.c_ds, c_dma=a.c_dma, c_salu=a.c_salu, first_burst=a.fb, align_pad=a.pad, thr_log2=a.thr,
            nodma=a.nodma, nods=a.nods, novalu=a.novalu, nomfma=a.nomfma, c_exp=a.c_exp, lag=a.lag, exp_end=a.exp_end, pre_ticks=a.pre_ticks, q_tick=a.q_tick, m_tick=a.m_tick, stpol=(' ' + a.stpol.replace('+', ' ')) if a.stpol else '')
    text, errs = g.build()
    open(a.o, "w").write(text)
    print("wrote", a.o, len(text), "bytes;", len(errs), "hazard reports")
```

```python
import math
import struct
import sys

from hazard import check

NAME = "standalone__tree_speculative_verify_tree_attention_over_candidate_token_tree__sampling"

HEADER = """; Kernarg layout for this problem (72 bytes, ptrs only, base s[0:1]):
;   offset  16: d_in[2] v_cache  shape=(32, 4, 2048, 128) dtype=bfloat16 strides=(2097152, 524288, 256, 2) contiguous=True
;   offset  32: d_in[4] v_tree  shape=(32, 4, 32, 128) dtype=bfloat16 strides=(32768, 8192, 256, 2) contiguous=True
; grid=ceil(out_elems/256), lds=0). Harness parses it; keep it on one line.
"""

MF = "v_mfma_f32_16x16x32_bf16"


def f32hex(x):
    return "0x%08x" % struct.unpack("<I", struct.pack("<f", x))[0]


class Gen:
    def __init__(self, nt=True, diag=0, dma_gaps=None, kread_gaps=None, vread_gaps=None, budget=8.5,
                 c_ds=4, c_dma=8, c_salu=4, first_burst=4, align_pad=0, thr_log2=14, q_start=0,
                 nodma=False, nods=False, novalu=False, nomfma=False, c_exp=8, lag=2, exp_end=54, stpol="", pre_ticks=4, q_tick=2, m_tick=4, tail_cap=8, qk_order=0, pv_order=0, lead=3):
        self.lead = lead
        self.qk_order, self.pv_order = qk_order, pv_order
        self.tail_cap = tail_cap
        self.pre_ticks, self.q_tick, self.m_tick = pre_ticks, q_tick, m_tick
        self.stpol = stpol
        self.exp_end = exp_end
        self.c_exp, self.lag = c_exp, lag
        self.nt, self.diag = nt, diag
        self.dma_gaps = dma_gaps or [4, 12, 20, 28, 38, 46, 54, 61]
        self.kread_gaps = kread_gaps or [0, 24]
        self.vread_gaps = vread_gaps or [8, 59]
        self.budget, self.c_ds, self.c_dma, self.c_salu = budget, c_ds, c_dma, c_salu
        self.first_burst, self.align_pad, self.thr_log2 = first_burst, align_pad, thr_log2
        self.q_start = q_start
        self.nodma, self.nods, self.novalu, self.nomfma = nodma, nods, novalu, nomfma
        self.out = []
        self.vKrd = 2
        self.vVrd = 6
        self.vKdma = 14
        self.vVdma = 18
        self.vL = 20
        self.vT = 24
        self.vS = 32
        self.vNM = 96
        self.vTS = 112
        self.vP = 128
        self.vO0 = 160
        self.vX = 224
        self.vOne = 248
        self.aO1, self.aQ, self.aK, self.aV = 0, 64, 128, 192
        self.sK, self.sV, self.sQ, self.sKT, self.sVT, self.sM, self.sO = 36, 40, 44, 48, 52, 56, 60
        self.sKoff, self.sVoff, self.sKdst, self.sVdst, self.sCnt, self.sThr, self.sC = 64, 65, 66, 67, 68, 69, 70
        self.sH0, self.sH1, self.sW, self.sW4k = 71, 72, 3, 73
        self.sKs, self.sVs, self.sRamp = 32, 33, 34
        self.LDS_V, self.LDS_T = 65536, 131072
        self.LDS_BYTES = 163840
        self.aM = 224
        self.sR4k = 74

    def e(self, s):
        self.out.append("    " + s)

    def lab(self, s):
        self.out.append(s + ":")

    def stamp(self, lane):
        if self.diag == 1 or (self.diag and lane >= 62):
            self.e("s_memtime s[80:81]")
            self.e("s_waitcnt lgkmcnt(0)")
            self.e(f"v_writelane_b32 v254, s80, {lane}")

    def rstamp(self, lane):
        if self.diag:
            self.e("s_memrealtime s[80:81]")
            self.e("s_waitcnt lgkmcnt(0)")
            self.e(f"v_writelane_b32 v255, s80, {lane}")
            self.stamp(lane)

    @staticmethod
    def r4(f, b):
        return f"{f}[{b}:{b+3}]"

    def S(self, buf, qt, kt):
        return self.r4("v", self.vS + 32 * buf + 8 * qt + 4 * kt)

    def Se(self, buf, i):
        return f"v{self.vS + 32 * buf + i}"

    def NM(self, qt):
        return self.r4("v", self.vNM + 4 * qt)

    def TS(self, qt):
        return self.r4("v", self.vTS + 4 * qt)

    def P(self, buf, qt):
        return self.r4("v", self.vP + 16 * buf + 4 * qt)

    def Pe(self, buf, i):
        return f"v{self.vP + 16 * buf + i}"

    def O(self, qt, dt):
        if qt < 2:
            return self.r4("v", self.vO0 + 32 * qt + 4 * dt)
        return self.r4("a", self.aO1 + 32 * (qt - 2) + 4 * dt)

    def Q(self, qt, ds):
        return self.r4("a", self.aQ + 16 * qt + 4 * ds)

    def Kf(self, kt, ds):
        return self.r4("a", self.aK + 16 * kt + 4 * ds)

    def Vf(self, dt):
        return self.r4("a", self.aV + 4 * dt)

    def srd(self, s):
        return f"s[{s}:{s+3}]"

    def dma(self, vreg, srd, soff, j):
        nt = " nt" if self.nt else ""
        return f"buffer_load_dwordx4 v{vreg}, {self.srd(srd)}, s{soff} offen offset:{1024*j}{nt} lds"

    def kdmas(self, srd, soff):
        return [self.dma(self.vKdma + j, srd, soff, j) for j in range(4)]

    def vdmas(self, srd, soff):
        return [self.dma(self.vVdma + (j & 1), srd, soff, j) for j in range(4)]

    def run_group(self, which):
        if which == "K":
            return ([f"s_add_u32 m0, s{self.sKdst}, s{self.sKs}"], self.kdmas(self.sK, self.sKoff),
                    [f"s_add_u32 s{self.sKoff}, s{self.sKoff}, 16384",
                     f"s_add_u32 s{self.sKs}, s{self.sKs}, 0x2000",
                     f"s_and_b32 s{self.sKs}, s{self.sKs}, 0x6000"])
        return ([f"s_add_u32 m0, s{self.sVdst}, s{self.sVs}"], self.vdmas(self.sV, self.sVoff),
                [f"s_add_u32 s{self.sVoff}, s{self.sVoff}, 16384",
                 f"s_add_u32 s{self.sVs}, s{self.sVs}, 0x2000",
                 f"s_and_b32 s{self.sVs}, s{self.sVs}, 0x6000"])

    def kreads(self, slot):
        return [f"ds_read_b128 {self.Kf(kt, ds)}, v{self.vKrd+ds} offset:{slot*8192 + kt*4096}"
                for kt in range(2) for ds in range(4)]

    def vreads(self, slot):
        out = []
        for dt in range(8):
            for e_ in range(2):
                b = self.aV + 4 * dt + 2 * e_
                out.append(f"ds_read_b64_tr_b16 a[{b}:{b+1}], v{self.vVrd+dt} offset:{slot*8192 + 4096*e_}")
        return out

    def qk_mfmas(self, sbuf, cinit=None, qts=range(4)):
        out = []
        for qt in qts:
            for kt in range(2):
                for ds in range(4):
                    c = (cinit if cinit is not None else self.NM(qt)) if ds == 0 else self.S(sbuf, qt, kt)
                    out.append(f"{MF} {self.S(sbuf, qt, kt)}, {self.Kf(kt, ds)}, {self.Q(qt, ds)}, {c}")
        return out

    def pv(self, pbuf, qt, dt):
        o = self.O(qt, dt)
        return f"{MF} {o}, {self.Vf(dt)}, {self.P(pbuf, qt)}, {o}"

    def summ(self, pbuf, qt):
        return f"{MF} {self.TS(qt)}, {self.r4('v', self.vOne)}, {self.P(pbuf, qt)}, 0"

    def cross(self, op, x, t0, t1):
        for sw in ("v_permlane16_swap_b32", "v_permlane32_swap_b32"):
            self.e(f"v_mov_b32 v{t0}, v{x}")
            self.e(f"v_mov_b32 v{t1}, v{x}")
            self.e("s_nop 1")
            self.e(f"{sw} v{t0}, v{t1}")
            self.e("s_nop 1")
            self.e(f"{op} v{x}, v{t0}, v{t1}")

    def maxchain(self, dst, regs, first=True):
        regs = list(regs)
        out = []
        if first:
            out.append(f"v_max3_f32 v{dst}, {regs[0]}, {regs[1]}, {regs[2]}")
            regs = regs[3:]
        while len(regs) >= 2:
            out.append(f"v_max3_f32 v{dst}, v{dst}, {regs[0]}, {regs[1]}")
            regs = regs[2:]
        if regs:
            out.append(f"v_max_f32 v{dst}, v{dst}, {regs[0]}")
        return out

    def softmax_plain(self, sbuf, qt, pbuf, sub_reg):
        T = self.vT
        for i in range(8):
            self.e(f"v_sub_f32 v{T+i}, {self.Se(sbuf, 8*qt+i)}, v{sub_reg}")
        for i in range(8):
            self.e(f"v_exp_f32 v{T+i}, v{T+i}")
        self.e("s_nop 0")
        for i in range(4):
            self.e(f"v_cvt_pk_bf16_f32 {self.Pe(pbuf, 4*qt+i)}, v{T+2*i}, v{T+2*i+1}")

    def prologue(self):
        e = self.e
        T, X = self.vT, self.vX
        e("s_cmp_ge_u32 s2, 256")
        e("s_cbranch_scc1 L_end")
        e("s_load_dwordx16 s[16:31], s[0:1], 0")
        if self.diag:
            e("s_load_dwordx2 s[84:85], s[0:1], 64")
            e("s_memtime s[80:81]")
            e("s_memrealtime s[86:87]")
            e("s_mov_b32 s90, 2")
            e("v_mov_b32 v254, 0")
            e("v_mov_b32 v255, 0")
        e("v_lshrrev_b32 v1, 6, v0")
        e("v_and_b32 v0, 63, v0")
        e(f"v_readfirstlane_b32 s{self.sW}, v1")
        e("s_and_b32 s6, s2, 7")
        e("s_lshr_b32 s7, s2, 3")
        e("s_and_b32 s5, s7, 1")
        e("s_lshr_b32 s7, s7, 1")
        e("s_lshl_b32 s7, s7, 3")
        e("s_or_b32 s4, s7, s6")
        e(f"v_and_b32 v{T}, 15, v0")
        e(f"v_lshrrev_b32 v{T+1}, 4, v0")
        e(f"v_lshlrev_b32 v{X+16}, 4, v0")
        e(f"v_lshlrev_b32 v{X+17}, 6, v{T}")
        e(f"v_lshl_or_b32 v{X+17}, v{T+1}, 3, v{X+17}")
        e(f"s_lshr_b32 s8, s{self.sW}, 1")
        e(f"s_and_b32 s9, s{self.sW}, 1")
        e("s_lshl_b32 s10, s8, 15")
        e("s_lshl_b32 s11, s9, 12")
        e(f"s_lshl_b32 s{self.sW4k}, s{self.sW}, 12")
        e("s_lshl_b32 s6, s4, 19")
        e("s_lshl_b32 s7, s4, 16")
        e("s_lshl_b32 s12, s5, 15")
        e("s_add_u32 s7, s7, s12")
        e("s_lshl_b32 s12, s4, 13")
        e("s_lshr_b32 s13, s4, 2")
        e("s_lshl_b32 s13, s13, 11")
        e(f"s_lshl_b32 s14, s{self.sW}, 13")
        e("s_add_u32 s15, s14, 4096")
        e(f"v_xor_b32 v{T+2}, v{T}, v{T+1}")
        e(f"v_lshlrev_b32 v{T+3}, 8, v{T+1}")
        e(f"v_lshl_or_b32 v{self.vKdma}, v{T+2}, 4, v{T+3}")
        for j in range(1, 4):
            e(f"v_xor_b32 v{self.vKdma+j}, {j << 6}, v{self.vKdma}")
        e(f"s_add_u32 s{self.sKdst}, s10, s11")
        e(f"s_add_u32 s{self.sVdst}, s{self.sKdst}, {self.LDS_V}")
        e(f"s_mov_b32 s{self.sKoff}, s{self.sW4k}")
        e(f"s_mov_b32 s{self.sVoff}, s{self.sW4k}")
        e("s_waitcnt lgkmcnt(0)")
        if self.diag:
            e("v_writelane_b32 v254, s80, 0")
            e("v_writelane_b32 v255, s86, 0")

        def mk(srd, ptr, off, size):
            e(f"s_add_u32 s{srd}, s{ptr}, s{off}")
            e(f"s_addc_u32 s{srd+1}, s{ptr+1}, 0")
            e(f"s_and_b32 s{srd+1}, s{srd+1}, 0xffff")
            e(f"s_mov_b32 s{srd+2}, {size}")
            e(f"s_mov_b32 s{srd+3}, 0x00020000")

        vm = [0]
        done = {}
        pend = []

        def add_group(tag, m0, dmas, post=()):
            for i, x in enumerate(dmas):
                pend.append((tag, [m0, "s_nop 0"] if i == 0 else [], x, list(post) if i == 3 else []))

        def tick(n=1):
            for _ in range(n):
                if not pend:
                    return
                tag, pre, x, post = pend.pop(0)
                for y in pre:
                    e(y)
                e(x)
                vm[0] += 1
                done[tag] = vm[0]
                for y in post:
                    e(y)

        def waitfor(tag, extra=""):
            assert not any(p[0] == tag for p in pend), tag
            e(f"s_waitcnt vmcnt({vm[0] - done[tag]}){extra}")

        self.stamp(40)
        mk(self.sM, 26, 13, 2048)
        for qt in range(2):
            for kt in range(2):
                bq = X + 8 + 4 * qt + 2 * kt
                pend.append(("M", [], f"buffer_load_dwordx2 v[{bq}:{bq+1}], v{X+17}, {self.srd(self.sM)}, 0 offen "
                             f"offset:{1024*qt + 32*kt}", []))
        tick(4)
        mk(self.sQ, 16, 7, 32768)
        for j in range(8):
            bq = self.vS + 4 * j
            pend.append((f"Q{j}", [], f"buffer_load_dwordx4 v[{bq}:{bq+3}], v{X+16}, {self.srd(self.sQ)}, "
                         f"s{14 + j // 4} offen offset:{1024*(j%4)}", []))
        tick(8)
        mk(self.sK, 18, 6, 524288)

        def kgrp(i):
            add_group(f"K{i}", f"s_add_u32 m0, s{self.sKdst}, {(i & 3)*8192}", self.kdmas(self.sK, self.sKoff),
                      [f"s_add_u32 s{self.sKoff}, s{self.sKoff}, 16384"])

        def vgrp(i):
            add_group(f"V{i}", f"s_add_u32 m0, s{self.sVdst}, {(i & 3)*8192}", self.vdmas(self.sV, self.sVoff),
                      [f"s_add_u32 s{self.sVoff}, s{self.sVoff}, 16384"])

        kgrp(0)
        tick(self.first_burst)
        self.stamp(41)
        mk(self.sV, 20, 6, 524288)
        mk(self.sKT, 22, 12, 8192)
        mk(self.sVT, 24, 12, 8192)
        mk(self.sO, 28, 7, 32768)
        e(f"v_lshlrev_b32 v{T+4}, 1, v{T+1}")
        e(f"v_xor_b32 v{T+4}, v{T}, v{T+4}")
        e(f"v_lshl_or_b32 v{self.vVdma}, v{T+4}, 4, v{T+3}")
        e(f"v_xor_b32 v{self.vVdma+1}, 0x80, v{self.vVdma}")
        kgrp(1)
        vgrp(0)
        kgrp(2)
        vgrp(1)
        kgrp(3)
        vgrp(2)
        e(f"v_lshlrev_b32 v{T+4}, 8, v{T}")
        e(f"v_lshl_or_b32 v{self.vKrd}, v{T+2}, 4, v{T+4}")
        e(f"v_add_u32 v{self.vKrd}, s10, v{self.vKrd}")
        for ds in range(1, 4):
            e(f"v_xor_b32 v{self.vKrd+ds}, {ds << 6}, v{self.vKrd}")
        e(f"v_lshrrev_b32 v{T+4}, 2, v0")
        e(f"v_and_b32 v{T+5}, 7, v{T+4}")
        e(f"v_lshlrev_b32 v{T+4}, 8, v{T+4}")
        e(f"v_lshl_or_b32 v{T+4}, v{T+5}, 5, v{T+4}")
        e(f"v_and_b32 v{T+5}, 3, v0")
        e(f"v_lshl_or_b32 v{T+4}, v{T+5}, 3, v{T+4}")
        e(f"s_add_u32 s14, s10, {self.LDS_V}")
        e(f"v_add_u32 v{self.vVrd}, s14, v{T+4}")
        for dt in range(1, 8):
            e(f"v_xor_b32 v{self.vVrd+dt}, {dt << 5}, v{self.vVrd}")
        e(f"s_mov_b32 s{self.sThr}, {f32hex(2.0**self.thr_log2)}")
        e(f"s_mov_b32 s{self.sCnt}, 0")
        e(f"s_mov_b32 s{self.sR4k}, s11")
        e("s_lshl_b32 s12, s9, 1")
        e("s_add_u32 s13, s12, s8")
        e(f"s_lshl_b32 s{self.sH0}, s13, 13")
        e("s_xor_b32 s13, s13, 1")
        e(f"s_lshl_b32 s{self.sH1}, s13, 13")
        QW = X + 18
        e(f"s_lshl_b32 s14, s{self.sW}, 13")
        e(f"s_add_u32 s14, s14, {self.LDS_T}")
        for j in range(4):
            e(f"v_add_u32 v{QW+j}, s14, v{self.vKdma+j}")
        QA = self.vP + 16
        e(f"s_sub_u32 s15, {self.LDS_T}, s10")
        for sub in range(2):
            e(f"s_add_u32 s14, s15, s{self.sH0 if sub == 0 else self.sH1}")
            for ds in range(4):
                e(f"v_add_u32 v{QA+4*sub+ds}, s14, v{self.vKrd+ds}")
        c = f32hex(128 ** -0.5 * math.log2(math.e))
        e(f"s_mov_b32 s14, {c}")
        e(f"s_mov_b32 s15, {c}")
        for r in range(64):
            e(f"v_mov_b32 v{self.vO0+r}, 0")
        tick(4 - self.first_burst)
        for r in range(64):
            e(f"v_accvgpr_write_b32 a{self.aO1+r}, 0")
        for r in range(4):
            e(f"v_mov_b32 v{self.vL+r}, 0")
            e(f"v_mov_b32 v{self.vOne+r}, 0x3f803f80")
        e(f"s_mov_b32 s12, {f32hex(-1e9)}")
        e(f"s_mov_b32 s13, {f32hex(math.log2(math.e))}")
        waitfor("M")
        for i in range(8):
            t0, t1 = T + 2 * (i % 2), T + 2 * (i % 2) + 1
            e(f"v_lshlrev_b32 v{t0}, 16, v{X+8+i}")
            e(f"v_and_b32 v{t1}, 0xffff0000, v{X+8+i}")
            for k_, t_ in enumerate((t0, t1)):
                e(f"v_sub_f32 v{t_}, 1.0, v{t_}")
                e(f"v_mul_f32 v{t_}, s12, v{t_}")
                e(f"v_mul_f32 v{X+2*i+k_}, s13, v{t_}")
        tick(self.pre_ticks)
        self.stamp(43)
        for j in range(8):
            waitfor(f"Q{j}")
            if j == 0:
                self.stamp(44)
            for i in range(4):
                src = self.vS + 4 * j + i
                t0 = T + 2 * (i % 3)
                e(f"v_lshlrev_b32 v{t0}, 16, v{src}")
                e(f"v_and_b32 v{t0+1}, 0xffff0000, v{src}")
                e(f"v_pk_mul_f32 v[{t0}:{t0+1}], v[{t0}:{t0+1}], s[14:15]")
                e(f"v_cvt_pk_bf16_f32 v{src}, v{t0}, v{t0+1}")
            bq = self.vS + 4 * j
            e(f"ds_write_b128 v{QW+(j&3)}, v[{bq}:{bq+3}] offset:{1024*j}")
            if j % self.q_tick == self.q_tick - 1:
                tick(1)
        self.stamp(45)
        waitfor("K0", " lgkmcnt(0)")
        self.stamp(47)
        e("s_barrier")
        self.stamp(48)
        kr0 = self.kreads(0)
        qr = [f"ds_read_b128 {self.Q(qt, ds)}, v{QA+4*(qt>>1)+ds} offset:{4096*(qt&1)}" for qt in range(4) for ds in range(4)]
        reads = qr[0:4] + kr0 + qr[4:]
        need = {0: 8, 4: 12, 8: 16, 16: 20, 24: 24}
        for x in reads[:14]:
            e(x)
        issued = 14
        mx = [self.vP + 24 + qt for qt in range(4)]
        mxl = [self.maxchain(mx[qt], [self.Se(0, 8 * qt + i) for i in range(8)]) for qt in range(4)]
        for i, x in enumerate(self.qk_mfmas(0, cinit="0")):
            if i in need:
                e(f"s_waitcnt lgkmcnt({issued - need[i]})")
            e(x)
            if issued < len(reads):
                e(reads[issued])
                issued += 1
            if i >= 16 and i % 8 in (4, 5):
                qt = i // 8 - 2
                for y in mxl[qt][2 * (i % 8 - 4): 2 * (i % 8 - 4) + 2]:
                    e(y)
            if i % self.m_tick == 1:
                tick(1)
        self.stamp(49)

        def rebase(qt):
            self.cross("v_max_f32", mx[qt], T, T + 1)
            for r in range(4):
                e(f"v_sub_f32 v{self.vNM+4*qt+r}, 0, v{mx[qt]}")
            for i in range(8):
                e(f"v_sub_f32 {self.Se(0, 8*qt+i)}, {self.Se(0, 8*qt+i)}, v{mx[qt]}")
            tick(1)

        rebase(0)
        rebase(1)
        while any(p[0] in ("K1", "V0") for p in pend):
            tick(1)
        waitfor("V0")
        e("s_barrier")
        self.stamp(56)
        for x in self.kreads(1):
            e(x)
        for qt in (2, 3):
            for y in mxl[qt]:
                e(y)
            rebase(qt)
        if self.lead == 3:
            kgrp(4)
            vgrp(3)
        e("s_waitcnt lgkmcnt(0)")
        qk1 = self.qk_mfmas(1)
        v0 = self.vreads(0)
        sm = []
        for i in range(32 + 2):
            if i < 32:
                sm.append([f"v_exp_f32 v{T + (i % 8)}, {self.Se(0, i)}"])
            k = i - 2
            if k >= 0 and k % 2 == 1:
                sm.append([v0[k >> 1], f"v_cvt_pk_bf16_f32 {self.Pe(0, k >> 1)}, v{T + ((k-1) % 8)}, v{T + (k % 8)}"])
        nsum = 0
        ncvt = 0
        ready = []
        for i in range(len(sm)):
            if i < len(qk1):
                e(qk1[i])
            elif nsum < len(ready) and ready[nsum] + 3 <= i:
                e(self.summ(0, nsum))
                nsum += 1
            for y in sm[i]:
                e(y)
                if "v_cvt" in y:
                    ncvt += 1
                    if ncvt % 4 == 0:
                        ready.append(i)
            if i % self.m_tick == 3:
                tick(1)
        e("s_nop 1")
        while nsum < 4:
            e(self.summ(0, nsum))
            nsum += 1
        tick(100)
        self.rstamp(62)
        e("s_branch L_it0")

    def iteration(self, q):
        e = self.e
        T = self.vT
        pb = q & 1
        nb = pb ^ 1
        NG = 64
        cap = self.budget
        sm = []
        for qt in range(4):
            sm.append((4, f"v_add_f32 v{self.vL+qt}, v{self.vL+qt}, v{self.vTS+4*qt}", None))
        lag = self.lag
        for i in range(32 + lag):
            if i < 32:
                sm.append((self.c_exp, f"v_exp_f32 v{T + (i % 8)}, {self.Se(nb, i)}", None))
            k = i - lag
            if 0 <= k < 32 and k & 1:
                sm.append((4, f"v_cvt_pk_bf16_f32 {self.Pe(nb, k >> 1)}, v{T + ((k-1) % 8)}, v{T + (k % 8)}",
                           (k >> 3) if k % 8 == 7 else None))
        kr = [(self.c_ds, x) for x in self.kreads((q + 2) & 3)]
        vr = [(self.c_ds, x) for x in self.vreads((q + 1) & 3)]
        dm = []
        dg = self.dma_gaps
        for gi, which in enumerate("KV"):
            if which == "K":
                m0 = f"s_add_u32 m0, s{self.sKdst}, {((q+2+self.lead)&3)*8192}"
                d = self.kdmas(self.sK, self.sKoff)
                adv = f"s_add_u32 s{self.sKoff}, s{self.sKoff}, 16384"
            else:
                m0 = f"s_add_u32 m0, s{self.sVdst}, {((q+1+self.lead)&3)*8192}"
                d = self.vdmas(self.sV, self.sVoff)
                adv = f"s_add_u32 s{self.sVoff}, s{self.sVoff}, 16384"
            if (q, which) in ((((30 - self.lead) & 3), "K"), (((31 - self.lead) & 3), "V")):
                dm.append((dg[4 * gi] - 3, 2 * self.c_salu,
                           [f"s_cmp_eq_u32 s{self.sCnt}, 7", f"s_cbranch_scc1 L_stub{which}", f"L_stub{which}_back:"]))
            dm.append((dg[4 * gi] - 1, self.c_salu, [m0]))
            for j in range(4):
                dm.append((dg[4 * gi + j], self.c_dma, [d[j]]))
            dm.append((dg[4 * gi + 3] + 1, self.c_salu, [adv]))
        fill = [[] for _ in range(NG)]
        sums = []
        last_sum_gap = None
        lastm0 = None
        exps = [f"v_exp_f32 v{T + (i % 8)}, {self.Se(nb, i)}" for i in range(32)]
        cvts = [f"v_cvt_pk_bf16_f32 {self.Pe(nb, k)}, v{T + ((2*k) % 8)}, v{T + ((2*k+1) % 8)}" for k in range(16)]
        ladd = [f"v_add_f32 v{self.vL+qt}, v{self.vL+qt}, v{self.vTS+4*qt}" for qt in range(4)]
        krl = [x for _, x in kr]
        vrl = [x for _, x in vr]
        ne = nc = nk = nv = 0
        exp_slot = {}
        slot = 0
        exp_end, k_end, v_end = self.exp_end, self.kread_gaps[-1], self.vread_gaps[-1]
        v_first = self.vread_gaps[0]
        last_ds2 = -9
        for g in range(NG):
            subs = 2 if (sums and sums[0][0] <= g) else 1
            for sub in range(subs):
                if sub == 1:
                    fill[g].append(sums.pop(0)[1])
                    last_sum_gap = g
                slot += 1
                b = 8
                free_salu = g != 31

                def valu_ready():
                    n = len(ladd)
                    ncv = nc
                    while ncv < 16 and 2 * ncv + 1 < ne and exp_slot[2 * ncv + 1] < slot:
                        n += 1
                        ncv += 1
                    return n

                def place_valu():
                    nonlocal nc
                    if ladd:
                        fill[g].append(ladd.pop(0))
                    else:
                        fill[g].append(cvts[nc])
                        if nc % 4 == 3:
                            sums.append((g + 2, self.summ(nb, nc // 4)))
                        nc += 1

                def ds_next():
                    kavail = nk < 8
                    vavail = nv < 16 and g >= max(v_first, 4 * (nv // 2) + 4)
                    kdue = kavail and nk < (g + 1) * 8 / (k_end + 1)
                    vdue = vavail and nv < (g - v_first + 1) * 16 / (v_end - v_first + 1)
                    if kdue:
                        return "k", True
                    if vdue:
                        return "v", True
                    if kavail:
                        return "k", False
                    if vavail:
                        return "v", False
                    return None, False

                def place_ds(kind):
                    nonlocal nk, nv
                    if kind == "k":
                        fill[g].append(krl[nk])
                        nk += 1
                    else:
                        fill[g].append(vrl[nv])
                        nv += 1

                while dm and dm[0][0] <= g:
                    ins = dm[0][2]
                    if " lds" in ins[0]:
                        if lastm0 == slot or b < 8:
                            break
                        b = 0
                    else:
                        n_s = len([x for x in ins if not x.endswith(":")])
                        cost = 4 * (n_s - (1 if free_salu else 0))
                        if cost > b or (not free_salu and b < 8):
                            break
                        b -= cost
                        free_salu = False
                        if "m0" in ins[0]:
                            lastm0 = slot
                    fill[g] += ins
                    dm.pop(0)
                if b == 0:
                    continue
                nval = valu_ready()
                kind, due = ds_next()
                exp_ok = ne < 32 and (ne < 8 or (ne - 8) // 2 < nc) and b >= 8
                behind = ne < (g + 1) * 32 / (exp_end + 1)
                pair_ok = (nval >= 1 and kind is not None) or nval >= 2
                late_ds = due and ((kind == "k" and g >= k_end - 2 * (8 - nk)) or (kind == "v" and g >= v_end - (16 - nv) // 2))
                if exp_ok and (behind or not pair_ok) and not late_ds and not (pair_ok and due and not behind):
                    fill[g].append(exps[ne])
                    exp_slot[ne] = slot
                    ne += 1
                    continue
                if kind is not None and (due or nval < 2):
                    place_ds(kind)
                    b -= 4
                    if b >= 4:
                        if valu_ready():
                            place_valu()
                        else:
                            k2, d2 = ds_next()
                            if k2 == "v" and kind == "v" and (slot - last_ds2 >= 2 or ne == 32):
                                place_ds(k2)
                                last_ds2 = slot
                elif nval:
                    place_valu()
                    b -= 4
                    if b >= 4 and valu_ready():
                        place_valu()
                elif exp_ok:
                    fill[g].append(exps[ne])
                    exp_slot[ne] = slot
                    ne += 1
        assert not dm and nk == 8 and nv == 16, (len(dm), nk, nv)
        assert ne == 32 and nc == 16 and not sums, ("softmax does not fit", ne, nc, len(sums))
        tail = []
        if q == 0:
            print("sched: last sum at gap", last_sum_gap, "left over", len(tail), [len(f) for f in fill], file=sys.stderr)
        check_ins = [f"v_max3_f32 v{T}, v{self.vTS}, v{self.vTS+4}, v{self.vTS+8}",
                     f"v_max_f32 v{T}, v{T}, v{self.vTS+12}",
                     f"v_cmp_lt_f32 vcc, s{self.sThr}, v{T}"]
        qkm = self.qk_mfmas(pb)
        if self.qk_order == 1:
            qkm = [qkm[8 * qt + 4 * kt + ds] for kt in range(2) for ds in range(4) for qt in range(4)]
        elif self.qk_order == 2:
            qkm = [qkm[8 * qt + 4 * kt + ds] for qt in range(4) for ds in range(4) for kt in range(2)]
        elif self.qk_order == 3:
            qkm = [qkm[8 * (2 * qp + qq) + 4 * kt + ds] for qp in range(2) for kt in range(2) for ds in range(4) for qq in range(2)]
        mf = [self.pv(pb, qt, dt) for dt in range(8) for qt in range(4)] + qkm
        self.lab(f"L_it{q}")
        if self.diag == 1:
            e("s_memtime s[80:81]")
        if self.diag == 3:
            e("s_memtime s[80:81]")
            e("s_memrealtime s[82:83]")
        e(f"s_waitcnt vmcnt({8*(self.lead-1)}) lgkmcnt(0)")
        if self.diag == 3:
            e("v_cmp_eq_u32 s[92:93], s90, v0")
            e("v_mov_b32 v253, s80")
            e("v_mov_b32 v252, s82")
            e("s_add_u32 s90, s90, 1")
            e("v_cndmask_b32 v254, v254, v253, s[92:93]")
            e("v_cndmask_b32 v255, v255, v252, s[92:93]")
        e("s_barrier")
        if self.diag == 1:
            e("s_memtime s[82:83]")
            e("v_cmp_eq_u32 s[92:93], s90, v0")
            e("v_mov_b32 v253, s80")
            e("s_nop 1")
            e("v_cndmask_b32 v254, v254, v253, s[92:93]")
        for i in range(NG):
            if i == 32:
                nv_after = 0
                for l in reversed(self.out):
                    if "ds_read_b128" in l:
                        break
                    if "ds_read_b64_tr" in l:
                        nv_after += 1
                e(f"s_waitcnt lgkmcnt({min(15, nv_after) if self.diag != 1 else 0})")
                if self.diag == 1:
                    e("v_mov_b32 v253, s82")
                    e("v_cndmask_b32 v255, v255, v253, s[92:93]")
                    e("s_add_u32 s90, s90, 1")
            if not self.nomfma:
                e(mf[i])
            for x in fill[i]:
                if x.endswith(":"):
                    self.out.append(x)
                    continue
                if self.nodma and " lds" in x:
                    continue
                if self.nods and x.startswith("ds_"):
                    continue
                if self.novalu and x.startswith("v_") and not x.startswith("v_mfma"):
                    continue
                if self.nomfma and x.startswith("v_mfma"):
                    continue
                e(x)
        for x in tail:
            if x.startswith("v_mfma"):
                e("s_nop 1")
            e(x)
        n_after = 0
        for l in reversed(self.out):
            if MF in l and f" {self.TS(3)}," in l:
                break
            if not l.endswith(":"):
                n_after += 1
        if n_after < 8:
            e(f"s_nop {8 - n_after - 1}")
        for x in check_ins:
            e(x)
        if not (self.novalu or self.nomfma or self.nods or self.nodma):
            e(f"s_cbranch_vccnz L_rare{q}")
        self.lab(f"L_back{q}")
        if q == 2:
            e(f"s_add_u32 s{self.sCnt}, s{self.sCnt}, 1")
            e(f"s_cmp_eq_u32 s{self.sCnt}, 8")
            e("s_cbranch_scc1 L_epi")
        if q == 3:
            e("s_branch L_it0")

    def stubs(self):
        e = self.e
        for which, srd, tsrd, off in (("K", self.sK, self.sKT, self.sKoff), ("V", self.sV, self.sVT, self.sVoff)):
            self.lab(f"L_stub{which}")
            for i in range(3):
                e(f"s_mov_b32 s{srd+i}, s{tsrd+i}")
            e(f"s_mov_b32 s{off}, s{self.sR4k}")
            e(f"s_branch L_stub{which}_back")

    def rare(self, q):
        e = self.e
        T, X = self.vT, self.vX + 20
        tailv = q == "T"
        pb = 1 if tailv else q & 1
        nb = pb ^ 1
        self.lab(f"L_rare{q}")
        e("s_nop 7")
        d, al = X, X + 1
        for qt in range(2 if tailv else 4):
            for y in self.maxchain(d, [self.Se(nb, 8 * qt + i) for i in range(8)]):
                e(y)
            self.cross("v_max_f32", d, T, T + 1)
            e(f"v_max_f32 v{d}, 0, v{d}")
            e(f"v_exp_f32 v{al}, -v{d}")
            for r in range(4):
                e(f"v_sub_f32 v{self.vNM+4*qt+r}, v{self.vNM+4*qt+r}, v{d}")
            for i in range(0 if tailv else 8):
                e(f"v_sub_f32 {self.Se(pb, 8*qt+i)}, {self.Se(pb, 8*qt+i)}, v{d}")
            e(f"v_mul_f32 v{self.vL+qt}, v{self.vL+qt}, v{al}")
            for r in range(32):
                if qt < 2:
                    o = f"v{self.vO0 + 32*qt + r}"
                    e(f"v_mul_f32 {o}, {o}, v{al}")
                else:
                    o = f"a{self.aO1 + 32*(qt-2) + r}"
                    e(f"v_accvgpr_read_b32 v{X+2}, {o}")
                    e(f"v_mul_f32 v{X+2}, v{X+2}, v{al}")
                    e(f"v_accvgpr_write_b32 {o}, v{X+2}")
            self.softmax_plain(nb, qt, nb, d)
            e("s_nop 1")
            e(self.summ(nb, qt))
        e("s_nop 7")
        e(f"s_branch L_back{q}")

    def epilogue(self):
        e = self.e
        T, X = self.vT, self.vX
        self.lab("L_epi")
        pb = 1
        self.rstamp(63)
        self.stamp(50)
        LN = X + 23
        e("s_waitcnt vmcnt(0) lgkmcnt(0)")
        e("s_barrier")
        self.stamp(51)
        OA = self.vS + 16
        misc = [
            f"v_add_f32 v{self.vL+qt}, v{self.vL+qt}, v{self.vTS+4*qt}" for qt in range(4)
        ]
        bias = [f"v_add_f32 {self.Se(0, i)}, {self.Se(0, i)}, v{X+i}" for i in range(16)]
        WA, PA, SA, SP = self.vS + 28, self.vS + 29, self.vS + 30, self.vS + 31
        v32 = []
        for dt in range(8):
            for e_ in range(2):
                bq = self.aK + 4 * dt + 2 * e_
                v32.append(f"ds_read_b64_tr_b16 a[{bq}:{bq+1}], v{self.vVrd+dt} offset:{4096*e_}")
        smx = []
        for i in range(16 + 2):
            if i < 16:
                smx.append(f"v_exp_f32 v{T + (i % 8)}, {self.Se(0, i)}")
            k = i - 2
            if k >= 0 and k & 1:
                smx.append(f"v_cvt_pk_bf16_f32 {self.Pe(0, k >> 1)}, v{T + ((k-1) % 8)}, v{T + (k % 8)}")
        addr = [
            f"s_lshl_b32 s6, s{self.sW}, 14",
            f"v_lshlrev_b32 v{LN}, 4, v0",
            f"v_add_u32 v{WA}, s6, v{LN}",
        ]
        addr_late = [
            f"v_xor_b32 v{PA}, 0x8000, v{WA}",
            f"s_lshl_b32 s6, s{self.sW}, 10",
            f"s_add_u32 s6, s6, {self.LDS_T}",
            f"v_add_u32 v{SA}, s6, v{LN}",
            f"v_xor_b32 v{SP}, 0x800, v{SA}",
            f"v_mov_b32 v{X+16}, v{self.vNM+8}",
            f"v_mov_b32 v{X+17}, v{self.vNM+12}",
            f"v_mov_b32 v{X+18}, v{self.vL+2}",
            f"v_mov_b32 v{X+19}, v{self.vL+3}",
            f"ds_write_b128 v{SA}, v[{X+16}:{X+19}]",
        ]
        wr = [f"ds_write_b128 v{WA}, a[{self.aO1+4*i}:{self.aO1+4*i+3}] offset:{1024*i}" for i in range(16)]
        stream = bias[:8] + smx[:2] + bias[8:] + misc + addr + smx[2:]
        order = [(qt, dt) for qt in (2, 3, 0, 1) for dt in range(8)]
        si = 0
        nw = 0
        for n, (qt, dt) in enumerate(order):
            e(self.pv(pb, qt, dt))
            if n < 16:
                e(v32[n])
            cost = 0
            if n >= 16 and n % 2 == 0:
                e(wr[nw])
                nw += 1
                cost = 4
            while si < len(stream) and cost < self.tail_cap:
                e(stream[si])
                cost += 8 if "v_exp" in stream[si] else 4
                si += 1
        for y in stream[si:]:
            e(y)
        e("s_nop 1")
        e(self.summ(0, 0))
        e(self.summ(0, 1))
        for y in addr_late:
            e(y)
        e(f"v_max_f32 v{T}, v{self.vTS}, v{self.vTS+4}")
        e(f"v_cmp_lt_f32 vcc, s{self.sThr}, v{T}")
        e("s_waitcnt lgkmcnt(4)")
        e("s_cbranch_vccnz L_rareT")
        self.lab("L_backT")
        addr2 = [
            f"v_add_f32 v{self.vL}, v{self.vL}, v{self.vTS}",
            f"v_add_f32 v{self.vL+1}, v{self.vL+1}, v{self.vTS+4}",
            f"s_lshl_b32 s6, s{self.sW}, 13",
            f"s_add_u32 s6, s6, {self.LDS_V}",
            f"v_and_b32 v{T}, 15, v0",
            f"v_lshrrev_b32 v{T+1}, 5, v0",
            f"v_xor_b32 v{T+1}, v{T+1}, v{T}",
            f"v_lshlrev_b32 v{T+2}, 8, v{T}",
            f"v_lshl_or_b32 v{T+1}, v{T+1}, 4, v{T+2}",
            f"v_bfe_u32 v{T+2}, v0, 4, 1",
            f"v_lshl_or_b32 v{T+1}, v{T+2}, 3, v{T+1}",
            f"v_add_u32 v{OA}, s6, v{T+1}",
        ] + [f"v_xor_b32 v{OA+dt}, {dt << 5}, v{OA}" for dt in range(1, 8)] \
          + [f"v_add_u32 v{OA+8+j}, s6, v{self.vKdma+j}" for j in range(4)] \
          + [f"s_add_u32 s7, s{self.sH0}, 4096"]
        for n in range(16):
            qt, dt = n // 8, n % 8
            o = self.O(qt, dt)
            e(f"{MF} {o}, {self.r4('a', self.aK + 4*dt)}, {self.P(0, qt)}, {o}")
            if nw < 16 and n < 8:
                e(wr[nw])
                nw += 1
            for y in addr2[2 * n: 2 * n + 2]:
                e(y)
        assert nw == 16
        e("s_waitcnt lgkmcnt(0)")
        self.stamp(52)
        e("s_barrier")
        self.stamp(53)
        e(f"ds_read_b128 v[{X+4}:{X+7}], v{SP}")
        R = self.vS + 32
        e(f"v_mov_b32 v{X+8}, v{self.vNM}")
        e(f"v_mov_b32 v{X+9}, v{self.vNM+4}")
        for i in range(14):
            e(f"ds_read_b128 v[{R+4*i}:{R+4*i+3}], v{PA} offset:{1024*i}")
        e("s_waitcnt lgkmcnt(14)")
        for i in range(14, 16):
            e(f"ds_read_b128 v[{R+4*i}:{R+4*i+3}], v{PA} offset:{1024*i}")
        CA, CB = X + 12, X + 16
        for qt in range(2):
            e(f"v_min_f32 v{T+qt}, v{X+8+qt}, v{X+4+qt}")
            e(f"v_sub_f32 v{CA+2*qt}, v{T+qt}, v{X+8+qt}")
            e(f"v_sub_f32 v{CB+2*qt}, v{T+qt}, v{X+4+qt}")
        for qt in range(2):
            e(f"v_exp_f32 v{CA+2*qt}, v{CA+2*qt}")
            e(f"v_exp_f32 v{CB+2*qt}, v{CB+2*qt}")
        for qt in range(2):
            e(f"v_mul_f32 v{T+qt}, v{self.vL+qt}, v{CA+2*qt}")
        for qt in range(2):
            e(f"v_fma_f32 v{T+qt}, v{X+6+qt}, v{CB+2*qt}, v{T+qt}")
        for qt in range(2):
            e(f"v_rcp_f32 v{T+qt}, v{T+qt}")
        e("s_nop 0")
        for qt in range(2):
            e(f"v_mul_f32 v{CA+2*qt}, v{CA+2*qt}, v{T+qt}")
            e(f"v_mul_f32 v{CB+2*qt}, v{CB+2*qt}, v{T+qt}")
        PK = self.vP
        R2 = self.vP
        lds_seq = ["r%d" % i for i in range(16)]

        def wait_lds(tag):
            idx = lds_seq.index(tag)
            n = len(lds_seq) - 1 - idx
            e(f"s_waitcnt lgkmcnt({min(n, 15)})")
            del lds_seq[: idx + 1]

        for qt in range(2):
            for dt in range(8):
                i4 = 8 * qt + dt
                b_ = self.vO0 + 4 * i4
                for h in range(2):
                    e(f"v_pk_mul_f32 v[{b_+2*h}:{b_+2*h+1}], v[{b_+2*h}:{b_+2*h+1}], v[{CA+2*qt}:{CA+2*qt+1}] op_sel_hi:[1,0]")
                if f"r{i4}" in lds_seq:
                    wait_lds(f"r{i4}")
                for h in range(2):
                    e(f"v_pk_fma_f32 v[{b_+2*h}:{b_+2*h+1}], v[{R+4*i4+2*h}:{R+4*i4+2*h+1}], v[{CB+2*qt}:{CB+2*qt+1}], "
                      f"v[{b_+2*h}:{b_+2*h+1}] op_sel_hi:[1,0,1]")
                e(f"v_cvt_pk_bf16_f32 v{PK+2*i4}, v{b_}, v{b_+1}")
                e(f"v_cvt_pk_bf16_f32 v{PK+2*i4+1}, v{b_+2}, v{b_+3}")
                e(f"ds_write_b64 v{OA+dt}, v[{PK+2*i4}:{PK+2*i4+1}] offset:{4096*qt}")
                lds_seq.append(f"w{i4}")
                if qt == 1 and dt == 1:
                    for j in range(4):
                        rb = self.vO0 + 4 * j
                        e(f"ds_read_b128 v[{rb}:{rb+3}], v{OA+8+j} offset:{1024*j}")
                        lds_seq.append(f"b{j}")
                if qt == 1 and dt >= 4:
                    j = dt - 4
                    wait_lds(f"b{j}")
                    rb = self.vO0 + 4 * j
                    e(f"buffer_store_dwordx4 v[{rb}:{rb+3}], v{LN}, {self.srd(self.sO)}, s{self.sH0} offen offset:{1024*j}{self.stpol}")
        self.stamp(54)
        for j in range(4, 8):
            rb = self.vO0 + 4 * j
            e(f"ds_read_b128 v[{rb}:{rb+3}], v{OA+8+(j&3)} offset:{1024*j}")
        for j in range(4, 8):
            e(f"s_waitcnt lgkmcnt({7-j})")
            rb = self.vO0 + 4 * j
            e(f"buffer_store_dwordx4 v[{rb}:{rb+3}], v{LN}, {self.srd(self.sO)}, s7 offen offset:{1024*(j&3)}{self.stpol}")
        if self.diag:
            self.stamp(55)
            e("s_waitcnt vmcnt(0) lgkmcnt(0)")
            e("s_memtime s[80:81]")
            e("s_memrealtime s[86:87]")
            e("s_waitcnt lgkmcnt(0)")
            e("v_writelane_b32 v254, s80, 1")
            e("v_writelane_b32 v255, s86, 1")
            e("s_lshl_b32 s6, s2, 2")
            e(f"s_add_u32 s6, s6, s{self.sW}")
            e("s_lshl_b32 s6, s6, 9")
            e("s_add_u32 s84, s84, s6")
            e("s_addc_u32 s85, s85, 0")
            e("s_and_b32 s85, s85, 0xffff")
            e("s_mov_b32 s86, 512")
            e("s_mov_b32 s87, 0x00020000")
            e("v_lshlrev_b32 v1, 3, v0")
            e("buffer_store_dwordx2 v[254:255], v1, s[84:87], 0 offen")
        self.lab("L_end")
        e("s_endpgm")

    def build(self):
        k = NAME + "_kernel"
        self.prologue()
        pro = list(self.out)
        self.out.append(".p2align 6")
        for _ in range(self.align_pad):
            self.e("s_nop 0")
        its = []
        for q in range(4):
            n0 = len(self.out)
            self.iteration(q)
            its.append(self.out[n0:])
        n0 = len(self.out)
        self.epilogue()
        epi = self.out[n0:]
        self.stubs()
        rares = []
        for q in (0, 1, 2, 3, "T"):
            n0 = len(self.out)
            self.rare(q)
            rares.append(self.out[n0:])
        errs = []

        def upto_exit(lines):
            idx = [i for i, l in enumerate(lines) if "L_epi" in l][0]
            return lines[: idx + 1]

        def from3b(lines):
            idx = [i for i, l in enumerate(lines) if l.startswith("L_it3b")][0]
            return lines[idx:]

        errs += check(pro + its[0] + its[1] + its[2] + its[3] + its[0], "main")
        ib = [i for i, l in enumerate(epi) if l.startswith("L_backT")][0]
        errs += check(epi[:ib] + rares[4] + epi[ib:], "rareT")
        errs += check(its[1] + upto_exit(its[2]) + epi, "exit")
        for q in range(4):
            errs += check(its[q] + rares[q] + its[(q + 1) & 3], f"rare{q}")
        errs += check(its[2] + rares[2] + epi, "rare-exit")
        for x in errs:
            print("HAZARD", x, file=sys.stderr)
        text = HEADER + f"; @launch grid=(256,1,1) block=(256,1,1) lds={self.LDS_BYTES}\n"
        text += '.amdgcn_target "amdgcn-amd-amdhsa--gfx950"\n.text\n'
        text += f".globl {k}\n.p2align 8\n.type {k},@function\n{k}:\n"
        text += "\n".join(self.out) + "\n"
        text += f""".section .rodata,"a"
.p2align 6
.amdhsa_kernel {k}
  .amdhsa_next_free_vgpr 512
  .amdhsa_next_free_sgpr 96
  .amdhsa_accum_offset 256
  .amdhsa_group_segment_fixed_size 0
  .amdhsa_kernarg_size 72
  .amdhsa_user_sgpr_count 2
  .amdhsa_user_sgpr_kernarg_segment_ptr 1
  .amdhsa_system_sgpr_workgroup_id_x 1
.end_amdhsa_kernel
"""
        return text, errs


if __name__ == "__main__":
    import argparse
    ap = argparse.ArgumentParser()
    ap.add_argument("-o", default=f"cdna_kernels/{NAME}.s")
    ap.add_argument("--nont", action="store_true")
    ap.add_argument("--diag", type=int, default=0)
    ap.add_argument("--pad", type=int, default=0)
    ap.add_argument("--dma", default=None)
    ap.add_argument("--kg", default=None)
    ap.add_argument("--vg", default=None)
    ap.add_argument("--budget", type=float, default=8)
    ap.add_argument("--c_ds", type=float, default=4)
    ap.add_argument("--c_dma", type=float, default=8)
    ap.add_argument("--c_salu", type=float, default=4)
    ap.add_argument("--fb", type=int, default=4)
    ap.add_argument("--c_exp", type=float, default=8)
    ap.add_argument("--lag", type=int, default=2)
    ap.add_argument("--exp_end", type=int, default=54)
    ap.add_argument("--stpol", default="sc0+sc1")
    ap.add_argument("--pre_ticks", type=int, default=4)
    ap.add_argument("--qk_order", type=int, default=0)
    ap.add_argument("--lead", type=int, default=3)
    ap.add_argument("--q_tick", type=int, default=2)
    ap.add_argument("--m_tick", type=int, default=4)
    ap.add_argument("--thr", type=int, default=14)
    for f in ("nodma", "nods", "novalu", "nomfma"):
        ap.add_argument("--" + f, action="store_true")
    a = ap.parse_args()
    L = lambda s: [int(x) for x in s.split(",")] if s else None
    g = Gen(nt=not a.nont, diag=a.diag, dma_gaps=L(a.dma), kread_gaps=L(a.kg), vread_gaps=L(a.vg), budget=a.budget,
            c_ds=a.c_ds, c_dma=a.c_dma, c_salu=a.c_salu, first_burst=a.fb, align_pad=a.pad, thr_log2=a.thr,
            nodma=a.nodma, nods=a.nods, novalu=a.novalu, nomfma=a.nomfma, c_exp=a.c_exp, lag=a.lag, exp_end=a.exp_end, pre_ticks=a.pre_ticks, qk_order=a.qk_order, lead=a.lead, q_tick=a.q_tick, m_tick=a.m_tick, stpol=(' ' + a.stpol.replace('+', ' ')) if a.stpol else '')
    text, errs = g.build()
    open(a.o, "w").write(text)
    print("wrote", a.o, len(text), "bytes;", len(errs), "hazard reports")
```

```python
import math
import struct
import sys

from hazard import check

NAME = "standalone__tree_speculative_verify_tree_attention_over_candidate_token_tree__sampling"

HEADER = """; Kernarg layout for this problem (72 bytes, ptrs only, base s[0:1]):
;   offset  16: d_in[2] v_cache  shape=(32, 4, 2048, 128) dtype=bfloat16 strides=(2097152, 524288, 256, 2) contiguous=True
;   offset  32: d_in[4] v_tree  shape=(32, 4, 32, 128) dtype=bfloat16 strides=(32768, 8192, 256, 2) contiguous=True
; grid=ceil(out_elems/256), lds=0). Harness parses it; keep it on one line.
"""

DOC = """; ---------------------------------------------------------------------------------------------
;  * K/V tiles stream HBM -> LDS with buffer_load ... lds into 4-slot rings (XOR swizzled sources).
; ---------------------------------------------------------------------------------------------
"""

MF = "v_mfma_f32_16x16x32_bf16"


def f32hex(x):
    return "0x%08x" % struct.unpack("<I", struct.pack("<f", x))[0]


class Gen:
    def __init__(self, nt=True, diag=0, dma_gaps=None, kread_gaps=None, vread_gaps=None, budget=8.5,
                 c_ds=4, c_dma=8, c_salu=4, first_burst=4, align_pad=0, thr_log2=14, q_start=0,
                 nodma=False, nods=False, novalu=False, nomfma=False, c_exp=8, lag=2, exp_end=54, stpol="", pre_ticks=4, q_tick=2, m_tick=4, tail_cap=8, qk_order=0, pv_order=0, lead=3, qpol=""):
        self.qpol = qpol
        self.lead = lead
        self.qk_order, self.pv_order = qk_order, pv_order
        self.tail_cap = tail_cap
        self.pre_ticks, self.q_tick, self.m_tick = pre_ticks, q_tick, m_tick
        self.stpol = stpol
        self.exp_end = exp_end
        self.c_exp, self.lag = c_exp, lag
        self.nt, self.diag = nt, diag
        self.dma_gaps = dma_gaps or [4, 12, 20, 28, 38, 46, 54, 61]
        self.kread_gaps = kread_gaps or [0, 24]
        self.vread_gaps = vread_gaps or [8, 59]
        self.budget, self.c_ds, self.c_dma, self.c_salu = budget, c_ds, c_dma, c_salu
        self.first_burst, self.align_pad, self.thr_log2 = first_burst, align_pad, thr_log2
        self.q_start = q_start
        self.nodma, self.nods, self.novalu, self.nomfma = nodma, nods, novalu, nomfma
        self.out = []
        self.vKrd = 2
        self.vVrd = 6
        self.vKdma = 14
        self.vVdma = 18
        self.vL = 20
        self.vT = 24
        self.vS = 32
        self.vNM = 96
        self.vTS = 112
        self.vP = 128
        self.vO0 = 160
        self.vX = 224
        self.vOne = 248
        self.aO1, self.aQ, self.aK, self.aV = 0, 64, 128, 192
        self.sK, self.sV, self.sQ, self.sKT, self.sVT, self.sM, self.sO = 36, 40, 44, 48, 52, 56, 60
        self.sKoff, self.sVoff, self.sKdst, self.sVdst, self.sCnt, self.sThr, self.sC = 64, 65, 66, 67, 68, 69, 70
        self.sH0, self.sH1, self.sW, self.sW4k = 71, 72, 3, 73
        self.sKs, self.sVs, self.sRamp = 32, 33, 34
        self.LDS_V, self.LDS_T = 65536, 131072
        self.LDS_BYTES = 163840
        self.aM = 224
        self.sR4k = 74

    def e(self, s):
        self.out.append("    " + s)

    def lab(self, s):
        self.out.append(s + ":")

    def stamp(self, lane):
        if self.diag == 1 or (self.diag and lane >= 62):
            self.e("s_memtime s[80:81]")
            self.e("s_waitcnt lgkmcnt(0)")
            self.e(f"v_writelane_b32 v254, s80, {lane}")

    def rstamp(self, lane):
        if self.diag:
            self.e("s_memrealtime s[80:81]")
            self.e("s_waitcnt lgkmcnt(0)")
            self.e(f"v_writelane_b32 v255, s80, {lane}")
            self.stamp(lane)

    @staticmethod
    def r4(f, b):
        return f"{f}[{b}:{b+3}]"

    def S(self, buf, qt, kt):
        return self.r4("v", self.vS + 32 * buf + 8 * qt + 4 * kt)

    def Se(self, buf, i):
        return f"v{self.vS + 32 * buf + i}"

    def NM(self, qt):
        return self.r4("v", self.vNM + 4 * qt)

    def TS(self, qt):
        return self.r4("v", self.vTS + 4 * qt)

    def P(self, buf, qt):
        return self.r4("v", self.vP + 16 * buf + 4 * qt)

    def Pe(self, buf, i):
        return f"v{self.vP + 16 * buf + i}"

    def O(self, qt, dt):
        if qt < 2:
            return self.r4("v", self.vO0 + 32 * qt + 4 * dt)
        return self.r4("a", self.aO1 + 32 * (qt - 2) + 4 * dt)

    def Q(self, qt, ds):
        return self.r4("a", self.aQ + 16 * qt + 4 * ds)

    def Kf(self, kt, ds):
        return self.r4("a", self.aK + 16 * kt + 4 * ds)

    def Vf(self, dt):
        return self.r4("a", self.aV + 4 * dt)

    def srd(self, s):
        return f"s[{s}:{s+3}]"

    def dma(self, vreg, srd, soff, j):
        nt = " nt" if self.nt else ""
        return f"buffer_load_dwordx4 v{vreg}, {self.srd(srd)}, s{soff} offen offset:{1024*j}{nt} lds"

    def kdmas(self, srd, soff):
        return [self.dma(self.vKdma + j, srd, soff, j) for j in range(4)]

    def vdmas(self, srd, soff):
        return [self.dma(self.vVdma + (j & 1), srd, soff, j) for j in range(4)]

    def run_group(self, which):
        if which == "K":
            return ([f"s_add_u32 m0, s{self.sKdst}, s{self.sKs}"], self.kdmas(self.sK, self.sKoff),
                    [f"s_add_u32 s{self.sKoff}, s{self.sKoff}, 16384",
                     f"s_add_u32 s{self.sKs}, s{self.sKs}, 0x2000",
                     f"s_and_b32 s{self.sKs}, s{self.sKs}, 0x6000"])
        return ([f"s_add_u32 m0, s{self.sVdst}, s{self.sVs}"], self.vdmas(self.sV, self.sVoff),
                [f"s_add_u32 s{self.sVoff}, s{self.sVoff}, 16384",
                 f"s_add_u32 s{self.sVs}, s{self.sVs}, 0x2000",
                 f"s_and_b32 s{self.sVs}, s{self.sVs}, 0x6000"])

    def kreads(self, slot):
        return [f"ds_read_b128 {self.Kf(kt, ds)}, v{self.vKrd+ds} offset:{slot*8192 + kt*4096}"
                for kt in range(2) for ds in range(4)]

    def vreads(self, slot):
        out = []
        for dt in range(8):
            for e_ in range(2):
                b = self.aV + 4 * dt + 2 * e_
                out.append(f"ds_read_b64_tr_b16 a[{b}:{b+1}], v{self.vVrd+dt} offset:{slot*8192 + 4096*e_}")
        return out

    def qk_mfmas(self, sbuf, cinit=None, qts=range(4)):
        out = []
        for qt in qts:
            for kt in range(2):
                for ds in range(4):
                    c = (cinit if cinit is not None else self.NM(qt)) if ds == 0 else self.S(sbuf, qt, kt)
                    out.append(f"{MF} {self.S(sbuf, qt, kt)}, {self.Kf(kt, ds)}, {self.Q(qt, ds)}, {c}")
        return out

    def pv(self, pbuf, qt, dt):
        o = self.O(qt, dt)
        return f"{MF} {o}, {self.Vf(dt)}, {self.P(pbuf, qt)}, {o}"

    def summ(self, pbuf, qt):
        return f"{MF} {self.TS(qt)}, {self.r4('v', self.vOne)}, {self.P(pbuf, qt)}, 0"

    def cross(self, op, x, t0, t1):
        for sw in ("v_permlane16_swap_b32", "v_permlane32_swap_b32"):
            self.e(f"v_mov_b32 v{t0}, v{x}")
            self.e(f"v_mov_b32 v{t1}, v{x}")
            self.e("s_nop 1")
            self.e(f"{sw} v{t0}, v{t1}")
            self.e("s_nop 1")
            self.e(f"{op} v{x}, v{t0}, v{t1}")

    def maxchain(self, dst, regs, first=True):
        regs = list(regs)
        out = []
        if first:
            out.append(f"v_max3_f32 v{dst}, {regs[0]}, {regs[1]}, {regs[2]}")
            regs = regs[3:]
        while len(regs) >= 2:
            out.append(f"v_max3_f32 v{dst}, v{dst}, {regs[0]}, {regs[1]}")
            regs = regs[2:]
        if regs:
            out.append(f"v_max_f32 v{dst}, v{dst}, {regs[0]}")
        return out

    def softmax_plain(self, sbuf, qt, pbuf, sub_reg):
        T = self.vT
        for i in range(8):
            self.e(f"v_sub_f32 v{T+i}, {self.Se(sbuf, 8*qt+i)}, v{sub_reg}")
        for i in range(8):
            self.e(f"v_exp_f32 v{T+i}, v{T+i}")
        self.e("s_nop 0")
        for i in range(4):
            self.e(f"v_cvt_pk_bf16_f32 {self.Pe(pbuf, 4*qt+i)}, v{T+2*i}, v{T+2*i+1}")

    def prologue(self):
        e = self.e
        T, X = self.vT, self.vX
        e("s_cmp_ge_u32 s2, 256")
        e("s_cbranch_scc1 L_end")
        e("s_load_dwordx16 s[16:31], s[0:1], 0")
        if self.diag:
            e("s_load_dwordx2 s[84:85], s[0:1], 64")
            e("s_memtime s[80:81]")
            e("s_memrealtime s[86:87]")
            e("s_mov_b32 s90, 2")
            e("v_mov_b32 v254, 0")
            e("v_mov_b32 v255, 0")
        e("v_lshrrev_b32 v1, 6, v0")
        e("v_and_b32 v0, 63, v0")
        e(f"v_readfirstlane_b32 s{self.sW}, v1")
        e("s_and_b32 s6, s2, 7")
        e("s_lshr_b32 s7, s2, 3")
        e("s_and_b32 s5, s7, 1")
        e("s_lshr_b32 s7, s7, 1")
        e("s_lshl_b32 s7, s7, 3")
        e("s_or_b32 s4, s7, s6")
        e(f"v_and_b32 v{T}, 15, v0")
        e(f"v_lshrrev_b32 v{T+1}, 4, v0")
        e(f"v_lshlrev_b32 v{X+16}, 4, v0")
        e(f"v_lshlrev_b32 v{X+17}, 6, v{T}")
        e(f"v_lshl_or_b32 v{X+17}, v{T+1}, 3, v{X+17}")
        e(f"s_lshr_b32 s8, s{self.sW}, 1")
        e(f"s_and_b32 s9, s{self.sW}, 1")
        e("s_lshl_b32 s10, s8, 15")
        e("s_lshl_b32 s11, s9, 12")
        e(f"s_lshl_b32 s{self.sW4k}, s{self.sW}, 12")
        e("s_lshl_b32 s6, s4, 19")
        e("s_lshl_b32 s7, s4, 16")
        e("s_lshl_b32 s12, s5, 15")
        e("s_add_u32 s7, s7, s12")
        e("s_lshl_b32 s12, s4, 13")
        e("s_lshr_b32 s13, s4, 2")
        e("s_lshl_b32 s13, s13, 11")
        e(f"s_lshl_b32 s14, s{self.sW}, 13")
        e("s_add_u32 s15, s14, 4096")
        e(f"v_xor_b32 v{T+2}, v{T}, v{T+1}")
        e(f"v_lshlrev_b32 v{T+3}, 8, v{T+1}")
        e(f"v_lshl_or_b32 v{self.vKdma}, v{T+2}, 4, v{T+3}")
        for j in range(1, 4):
            e(f"v_xor_b32 v{self.vKdma+j}, {j << 6}, v{self.vKdma}")
        e(f"s_add_u32 s{self.sKdst}, s10, s11")
        e(f"s_add_u32 s{self.sVdst}, s{self.sKdst}, {self.LDS_V}")
        e(f"s_mov_b32 s{self.sKoff}, s{self.sW4k}")
        e(f"s_mov_b32 s{self.sVoff}, s{self.sW4k}")
        e("s_waitcnt lgkmcnt(0)")
        if self.diag:
            e("v_writelane_b32 v254, s80, 0")
            e("v_writelane_b32 v255, s86, 0")

        def mk(srd, ptr, off, size):
            e(f"s_add_u32 s{srd}, s{ptr}, s{off}")
            e(f"s_addc_u32 s{srd+1}, s{ptr+1}, 0")
            e(f"s_and_b32 s{srd+1}, s{srd+1}, 0xffff")
            e(f"s_mov_b32 s{srd+2}, {size}")
            e(f"s_mov_b32 s{srd+3}, 0x00020000")

        vm = [0]
        done = {}
        pend = []

        def add_group(tag, m0, dmas, post=()):
            for i, x in enumerate(dmas):
                pend.append((tag, [m0, "s_nop 0"] if i == 0 else [], x, list(post) if i == 3 else []))

        def tick(n=1):
            for _ in range(n):
                if not pend:
                    return
                tag, pre, x, post = pend.pop(0)
                for y in pre:
                    e(y)
                e(x)
                vm[0] += 1
                done[tag] = vm[0]
                for y in post:
                    e(y)

        def waitfor(tag, extra=""):
            assert not any(p[0] == tag for p in pend), tag
            e(f"s_waitcnt vmcnt({vm[0] - done[tag]}){extra}")

        self.stamp(40)
        mk(self.sM, 26, 13, 2048)
        for qt in range(2):
            for kt in range(2):
                bq = X + 8 + 4 * qt + 2 * kt
                pend.append(("M", [], f"buffer_load_dwordx2 v[{bq}:{bq+1}], v{X+17}, {self.srd(self.sM)}, 0 offen "
                             f"offset:{1024*qt + 32*kt}", []))
        tick(4)
        mk(self.sQ, 16, 7, 32768)
        for j in range(8):
            bq = self.vS + 4 * j
            pend.append((f"Q{j}", [], f"buffer_load_dwordx4 v[{bq}:{bq+3}], v{X+16}, {self.srd(self.sQ)}, "
                         f"s{14 + j // 4} offen offset:{1024*(j%4)}{self.qpol}", []))
        tick(8)
        mk(self.sK, 18, 6, 524288)

        def kgrp(i):
            add_group(f"K{i}", f"s_add_u32 m0, s{self.sKdst}, {(i & 3)*8192}", self.kdmas(self.sK, self.sKoff),
                      [f"s_add_u32 s{self.sKoff}, s{self.sKoff}, 16384"])

        def vgrp(i):
            add_group(f"V{i}", f"s_add_u32 m0, s{self.sVdst}, {(i & 3)*8192}", self.vdmas(self.sV, self.sVoff),
                      [f"s_add_u32 s{self.sVoff}, s{self.sVoff}, 16384"])

        kgrp(0)
        tick(self.first_burst)
        self.stamp(41)
        mk(self.sV, 20, 6, 524288)
        mk(self.sKT, 22, 12, 8192)
        mk(self.sVT, 24, 12, 8192)
        mk(self.sO, 28, 7, 32768)
        e(f"v_lshlrev_b32 v{T+4}, 1, v{T+1}")
        e(f"v_xor_b32 v{T+4}, v{T}, v{T+4}")
        e(f"v_lshl_or_b32 v{self.vVdma}, v{T+4}, 4, v{T+3}")
        e(f"v_xor_b32 v{self.vVdma+1}, 0x80, v{self.vVdma}")
        kgrp(1)
        vgrp(0)
        kgrp(2)
        vgrp(1)
        kgrp(3)
        vgrp(2)
        e(f"v_lshlrev_b32 v{T+4}, 8, v{T}")
        e(f"v_lshl_or_b32 v{self.vKrd}, v{T+2}, 4, v{T+4}")
        e(f"v_add_u32 v{self.vKrd}, s10, v{self.vKrd}")
        for ds in range(1, 4):
            e(f"v_xor_b32 v{self.vKrd+ds}, {ds << 6}, v{self.vKrd}")
        e(f"v_lshrrev_b32 v{T+4}, 2, v0")
        e(f"v_and_b32 v{T+5}, 7, v{T+4}")
        e(f"v_lshlrev_b32 v{T+4}, 8, v{T+4}")
        e(f"v_lshl_or_b32 v{T+4}, v{T+5}, 5, v{T+4}")
        e(f"v_and_b32 v{T+5}, 3, v0")
        e(f"v_lshl_or_b32 v{T+4}, v{T+5}, 3, v{T+4}")
        e(f"s_add_u32 s14, s10, {self.LDS_V}")
        e(f"v_add_u32 v{self.vVrd}, s14, v{T+4}")
        for dt in range(1, 8):
            e(f"v_xor_b32 v{self.vVrd+dt}, {dt << 5}, v{self.vVrd}")
        e(f"s_mov_b32 s{self.sThr}, {f32hex(2.0**self.thr_log2)}")
        e(f"s_mov_b32 s{self.sCnt}, 0")
        e(f"s_mov_b32 s{self.sR4k}, s11")
        e("s_lshl_b32 s12, s9, 1")
        e("s_add_u32 s13, s12, s8")
        e(f"s_lshl_b32 s{self.sH0}, s13, 13")
        e("s_xor_b32 s13, s13, 1")
        e(f"s_lshl_b32 s{self.sH1}, s13, 13")
        QW = X + 18
        e(f"s_lshl_b32 s14, s{self.sW}, 13")
        e(f"s_add_u32 s14, s14, {self.LDS_T}")
        for j in range(4):
            e(f"v_add_u32 v{QW+j}, s14, v{self.vKdma+j}")
        QA = self.vP + 16
        e(f"s_sub_u32 s15, {self.LDS_T}, s10")
        for sub in range(2):
            e(f"s_add_u32 s14, s15, s{self.sH0 if sub == 0 else self.sH1}")
            for ds in range(4):
                e(f"v_add_u32 v{QA+4*sub+ds}, s14, v{self.vKrd+ds}")
        c = f32hex(128 ** -0.5 * math.log2(math.e))
        e(f"s_mov_b32 s14, {c}")
        e(f"s_mov_b32 s15, {c}")
        for r in range(64):
            e(f"v_mov_b32 v{self.vO0+r}, 0")
        tick(4 - self.first_burst)
        for r in range(64):
            e(f"v_accvgpr_write_b32 a{self.aO1+r}, 0")
        for r in range(4):
            e(f"v_mov_b32 v{self.vL+r}, 0")
            e(f"v_mov_b32 v{self.vOne+r}, 0x3f803f80")
        e(f"s_mov_b32 s12, {f32hex(-1e9)}")
        e(f"s_mov_b32 s13, {f32hex(math.log2(math.e))}")
        waitfor("M")
        for i in range(8):
            t0, t1 = T + 2 * (i % 2), T + 2 * (i % 2) + 1
            e(f"v_lshlrev_b32 v{t0}, 16, v{X+8+i}")
            e(f"v_and_b32 v{t1}, 0xffff0000, v{X+8+i}")
            for k_, t_ in enumerate((t0, t1)):
                e(f"v_sub_f32 v{t_}, 1.0, v{t_}")
                e(f"v_mul_f32 v{t_}, s12, v{t_}")
                e(f"v_mul_f32 v{X+2*i+k_}, s13, v{t_}")
        tick(self.pre_ticks)
        self.stamp(43)
        for j in range(8):
            waitfor(f"Q{j}")
            if j == 0:
                self.stamp(44)
            for i in range(4):
                src = self.vS + 4 * j + i
                t0 = T + 2 * (i % 3)
                e(f"v_lshlrev_b32 v{t0}, 16, v{src}")
                e(f"v_and_b32 v{t0+1}, 0xffff0000, v{src}")
                e(f"v_pk_mul_f32 v[{t0}:{t0+1}], v[{t0}:{t0+1}], s[14:15]")
                e(f"v_cvt_pk_bf16_f32 v{src}, v{t0}, v{t0+1}")
            bq = self.vS + 4 * j
            e(f"ds_write_b128 v{QW+(j&3)}, v[{bq}:{bq+3}] offset:{1024*j}")
            if j % self.q_tick == self.q_tick - 1:
                tick(1)
        self.stamp(45)
        waitfor("K0", " lgkmcnt(0)")
        self.stamp(47)
        e("s_barrier")
        self.stamp(48)
        kr0 = self.kreads(0)
        qr = [f"ds_read_b128 {self.Q(qt, ds)}, v{QA+4*(qt>>1)+ds} offset:{4096*(qt&1)}" for qt in range(4) for ds in range(4)]
        reads = qr[0:4] + kr0 + qr[4:]
        need = {0: 8, 4: 12, 8: 16, 16: 20, 24: 24}
        for x in reads[:14]:
            e(x)
        issued = 14
        mx = [self.vP + 24 + qt for qt in range(4)]
        mxl = [self.maxchain(mx[qt], [self.Se(0, 8 * qt + i) for i in range(8)]) for qt in range(4)]
        for i, x in enumerate(self.qk_mfmas(0, cinit="0")):
            if i in need:
                e(f"s_waitcnt lgkmcnt({issued - need[i]})")
            e(x)
            if issued < len(reads):
                e(reads[issued])
                issued += 1
            if i >= 16 and i % 8 in (4, 5):
                qt = i // 8 - 2
                for y in mxl[qt][2 * (i % 8 - 4): 2 * (i % 8 - 4) + 2]:
                    e(y)
            if i % self.m_tick == 1:
                tick(1)
        self.stamp(49)

        def rebase(qt):
            self.cross("v_max_f32", mx[qt], T, T + 1)
            for r in range(4):
                e(f"v_sub_f32 v{self.vNM+4*qt+r}, 0, v{mx[qt]}")
            for i in range(8):
                e(f"v_sub_f32 {self.Se(0, 8*qt+i)}, {self.Se(0, 8*qt+i)}, v{mx[qt]}")
            tick(1)

        rebase(0)
        rebase(1)
        while any(p[0] in ("K1", "V0") for p in pend):
            tick(1)
        waitfor("V0")
        e("s_barrier")
        self.stamp(56)
        for x in self.kreads(1):
            e(x)
        for qt in (2, 3):
            for y in mxl[qt]:
                e(y)
            rebase(qt)
        if self.lead == 3:
            kgrp(4)
            vgrp(3)
        e("s_waitcnt lgkmcnt(0)")
        qk1 = self.qk_mfmas(1)
        v0 = self.vreads(0)
        sm = []
        for i in range(32 + 2):
            if i < 32:
                sm.append([f"v_exp_f32 v{T + (i % 8)}, {self.Se(0, i)}"])
            k = i - 2
            if k >= 0 and k % 2 == 1:
                sm.append([v0[k >> 1], f"v_cvt_pk_bf16_f32 {self.Pe(0, k >> 1)}, v{T + ((k-1) % 8)}, v{T + (k % 8)}"])
        nsum = 0
        ncvt = 0
        ready = []
        for i in range(len(sm)):
            if i < len(qk1):
                e(qk1[i])
            elif nsum < len(ready) and ready[nsum] + 3 <= i:
                e(self.summ(0, nsum))
                nsum += 1
            for y in sm[i]:
                e(y)
                if "v_cvt" in y:
                    ncvt += 1
                    if ncvt % 4 == 0:
                        ready.append(i)
            if i % self.m_tick == 3:
                tick(1)
        e("s_nop 1")
        while nsum < 4:
            e(self.summ(0, nsum))
            nsum += 1
        tick(100)
        self.rstamp(62)
        e("s_branch L_it0")

    def iteration(self, q):
        e = self.e
        T = self.vT
        pb = q & 1
        nb = pb ^ 1
        NG = 64
        cap = self.budget
        sm = []
        for qt in range(4):
            sm.append((4, f"v_add_f32 v{self.vL+qt}, v{self.vL+qt}, v{self.vTS+4*qt}", None))
        lag = self.lag
        for i in range(32 + lag):
            if i < 32:
                sm.append((self.c_exp, f"v_exp_f32 v{T + (i % 8)}, {self.Se(nb, i)}", None))
            k = i - lag
            if 0 <= k < 32 and k & 1:
                sm.append((4, f"v_cvt_pk_bf16_f32 {self.Pe(nb, k >> 1)}, v{T + ((k-1) % 8)}, v{T + (k % 8)}",
                           (k >> 3) if k % 8 == 7 else None))
        kr = [(self.c_ds, x) for x in self.kreads((q + 2) & 3)]
        vr = [(self.c_ds, x) for x in self.vreads((q + 1) & 3)]
        dm = []
        dg = self.dma_gaps
        for gi, which in enumerate("KV"):
            if which == "K":
                m0 = f"s_add_u32 m0, s{self.sKdst}, {((q+2+self.lead)&3)*8192}"
                d = self.kdmas(self.sK, self.sKoff)
                adv = f"s_add_u32 s{self.sKoff}, s{self.sKoff}, 16384"
            else:
                m0 = f"s_add_u32 m0, s{self.sVdst}, {((q+1+self.lead)&3)*8192}"
                d = self.vdmas(self.sV, self.sVoff)
                adv = f"s_add_u32 s{self.sVoff}, s{self.sVoff}, 16384"
            if (q, which) in ((((30 - self.lead) & 3), "K"), (((31 - self.lead) & 3), "V")):
                dm.append((dg[4 * gi] - 3, 2 * self.c_salu,
                           [f"s_cmp_eq_u32 s{self.sCnt}, 7", f"s_cbranch_scc1 L_stub{which}", f"L_stub{which}_back:"]))
            dm.append((dg[4 * gi] - 1, self.c_salu, [m0]))
            for j in range(4):
                dm.append((dg[4 * gi + j], self.c_dma, [d[j]]))
            dm.append((dg[4 * gi + 3] + 1, self.c_salu, [adv]))
        fill = [[] for _ in range(NG)]
        sums = []
        last_sum_gap = None
        lastm0 = None
        exps = [f"v_exp_f32 v{T + (i % 8)}, {self.Se(nb, i)}" for i in range(32)]
        cvts = [f"v_cvt_pk_bf16_f32 {self.Pe(nb, k)}, v{T + ((2*k) % 8)}, v{T + ((2*k+1) % 8)}" for k in range(16)]
        ladd = [f"v_add_f32 v{self.vL+qt}, v{self.vL+qt}, v{self.vTS+4*qt}" for qt in range(4)]
        krl = [x for _, x in kr]
        vrl = [x for _, x in vr]
        ne = nc = nk = nv = 0
        exp_slot = {}
        slot = 0
        exp_end, k_end, v_end = self.exp_end, self.kread_gaps[-1], self.vread_gaps[-1]
        v_first = self.vread_gaps[0]
        last_ds2 = -9
        for g in range(NG):
            subs = 2 if (sums and sums[0][0] <= g) else 1
            for sub in range(subs):
                if sub == 1:
                    fill[g].append(sums.pop(0)[1])
                    last_sum_gap = g
                slot += 1
                b = 8
                free_salu = g != 31

                def valu_ready():
                    n = len(ladd)
                    ncv = nc
                    while ncv < 16 and 2 * ncv + 1 < ne and exp_slot[2 * ncv + 1] < slot:
                        n += 1
                        ncv += 1
                    return n

                def place_valu():
                    nonlocal nc
                    if ladd:
                        fill[g].append(ladd.pop(0))
                    else:
                        fill[g].append(cvts[nc])
                        if nc % 4 == 3:
                            sums.append((g + 2, self.summ(nb, nc // 4)))
                        nc += 1

                def ds_next():
                    kavail = nk < 8
                    vavail = nv < 16 and g >= max(v_first, 4 * (nv // 2) + 4)
                    kdue = kavail and nk < (g + 1) * 8 / (k_end + 1)
                    vdue = vavail and nv < (g - v_first + 1) * 16 / (v_end - v_first + 1)
                    if kdue:
                        return "k", True
                    if vdue:
                        return "v", True
                    if kavail:
                        return "k", False
                    if vavail:
                        return "v", False
                    return None, False

                def place_ds(kind):
                    nonlocal nk, nv
                    if kind == "k":
                        fill[g].append(krl[nk])
                        nk += 1
                    else:
                        fill[g].append(vrl[nv])
                        nv += 1

                while dm and dm[0][0] <= g:
                    ins = dm[0][2]
                    if " lds" in ins[0]:
                        if lastm0 == slot or b < 8:
                            break
                        b = 0
                    else:
                        n_s = len([x for x in ins if not x.endswith(":")])
                        cost = 4 * (n_s - (1 if free_salu else 0))
                        if cost > b or (not free_salu and b < 8):
                            break
                        b -= cost
                        free_salu = False
                        if "m0" in ins[0]:
                            lastm0 = slot
                    fill[g] += ins
                    dm.pop(0)
                if b == 0:
                    continue
                nval = valu_ready()
                kind, due = ds_next()
                exp_ok = ne < 32 and (ne < 8 or (ne - 8) // 2 < nc) and b >= 8
                behind = ne < (g + 1) * 32 / (exp_end + 1)
                pair_ok = (nval >= 1 and kind is not None) or nval >= 2
                late_ds = due and ((kind == "k" and g >= k_end - 2 * (8 - nk)) or (kind == "v" and g >= v_end - (16 - nv) // 2))
                if exp_ok and (behind or not pair_ok) and not late_ds and not (pair_ok and due and not behind):
                    fill[g].append(exps[ne])
                    exp_slot[ne] = slot
                    ne += 1
                    continue
                if kind is not None and (due or nval < 2):
                    place_ds(kind)
                    b -= 4
                    if b >= 4:
                        if valu_ready():
                            place_valu()
                        else:
                            k2, d2 = ds_next()
                            if k2 == "v" and kind == "v" and (slot - last_ds2 >= 2 or ne == 32):
                                place_ds(k2)
                                last_ds2 = slot
                elif nval:
                    place_valu()
                    b -= 4
                    if b >= 4 and valu_ready():
                        place_valu()
                elif exp_ok:
                    fill[g].append(exps[ne])
                    exp_slot[ne] = slot
                    ne += 1
        assert not dm and nk == 8 and nv == 16, (len(dm), nk, nv)
        assert ne == 32 and nc == 16 and not sums, ("softmax does not fit", ne, nc, len(sums))
        tail = []
        if q == 0:
            print("sched: last sum at gap", last_sum_gap, "left over", len(tail), [len(f) for f in fill], file=sys.stderr)
        check_ins = [f"v_max3_f32 v{T}, v{self.vTS}, v{self.vTS+4}, v{self.vTS+8}",
                     f"v_max_f32 v{T}, v{T}, v{self.vTS+12}",
                     f"v_cmp_lt_f32 vcc, s{self.sThr}, v{T}"]
        qkm = self.qk_mfmas(pb)
        if self.qk_order == 1:
            qkm = [qkm[8 * qt + 4 * kt + ds] for kt in range(2) for ds in range(4) for qt in range(4)]
        elif self.qk_order == 2:
            qkm = [qkm[8 * qt + 4 * kt + ds] for qt in range(4) for ds in range(4) for kt in range(2)]
        elif self.qk_order == 3:
            qkm = [qkm[8 * (2 * qp + qq) + 4 * kt + ds] for qp in range(2) for kt in range(2) for ds in range(4) for qq in range(2)]
        mf = [self.pv(pb, qt, dt) for dt in range(8) for qt in range(4)] + qkm
        self.lab(f"L_it{q}")
        if self.diag == 1:
            e("s_memtime s[80:81]")
        if self.diag == 3:
            e("s_memtime s[80:81]")
            e("s_memrealtime s[82:83]")
        e(f"s_waitcnt vmcnt({8*(self.lead-1)}) lgkmcnt(0)")
        if self.diag == 3:
            e("v_cmp_eq_u32 s[92:93], s90, v0")
            e("v_mov_b32 v253, s80")
            e("v_mov_b32 v252, s82")
            e("s_add_u32 s90, s90, 1")
            e("v_cndmask_b32 v254, v254, v253, s[92:93]")
            e("v_cndmask_b32 v255, v255, v252, s[92:93]")
        e("s_barrier")
        if self.diag == 1:
            e("s_memtime s[82:83]")
            e("v_cmp_eq_u32 s[92:93], s90, v0")
            e("v_mov_b32 v253, s80")
            e("s_nop 1")
            e("v_cndmask_b32 v254, v254, v253, s[92:93]")
        for i in range(NG):
            if i == 32:
                nv_after = 0
                for l in reversed(self.out):
                    if "ds_read_b128" in l:
                        break
                    if "ds_read_b64_tr" in l:
                        nv_after += 1
                e(f"s_waitcnt lgkmcnt({min(15, nv_after) if self.diag != 1 else 0})")
                if self.diag == 1:
                    e("v_mov_b32 v253, s82")
                    e("v_cndmask_b32 v255, v255, v253, s[92:93]")
                    e("s_add_u32 s90, s90, 1")
            if not self.nomfma:
                e(mf[i])
            for x in fill[i]:
                if x.endswith(":"):
                    self.out.append(x)
                    continue
                if self.nodma and " lds" in x:
                    continue
                if self.nods and x.startswith("ds_"):
                    continue
                if self.novalu and x.startswith("v_") and not x.startswith("v_mfma"):
                    continue
                if self.nomfma and x.startswith("v_mfma"):
                    continue
                e(x)
        for x in tail:
            if x.startswith("v_mfma"):
                e("s_nop 1")
            e(x)
        n_after = 0
        for l in reversed(self.out):
            if MF in l and f" {self.TS(3)}," in l:
                break
            if not l.endswith(":"):
                n_after += 1
        if n_after < 8:
            e(f"s_nop {8 - n_after - 1}")
        for x in check_ins:
            e(x)
        if not (self.novalu or self.nomfma or self.nods or self.nodma):
            e(f"s_cbranch_vccnz L_rare{q}")
        self.lab(f"L_back{q}")
        if q == 2:
            e(f"s_add_u32 s{self.sCnt}, s{self.sCnt}, 1")
            e(f"s_cmp_eq_u32 s{self.sCnt}, 8")
            e("s_cbranch_scc1 L_epi")
        if q == 3:
            e("s_branch L_it0")

    def stubs(self):
        e = self.e
        for which, srd, tsrd, off in (("K", self.sK, self.sKT, self.sKoff), ("V", self.sV, self.sVT, self.sVoff)):
            self.lab(f"L_stub{which}")
            for i in range(3):
                e(f"s_mov_b32 s{srd+i}, s{tsrd+i}")
            e(f"s_mov_b32 s{off}, s{self.sR4k}")
            e(f"s_branch L_stub{which}_back")

    def rare(self, q):
        e = self.e
        T, X = self.vT, self.vX + 20
        tailv = q == "T"
        pb = 1 if tailv else q & 1
        nb = pb ^ 1
        self.lab(f"L_rare{q}")
        e("s_nop 7")
        d, al = X, X + 1
        for qt in range(2 if tailv else 4):
            for y in self.maxchain(d, [self.Se(nb, 8 * qt + i) for i in range(8)]):
                e(y)
            self.cross("v_max_f32", d, T, T + 1)
            e(f"v_max_f32 v{d}, 0, v{d}")
            e(f"v_exp_f32 v{al}, -v{d}")
            for r in range(4):
                e(f"v_sub_f32 v{self.vNM+4*qt+r}, v{self.vNM+4*qt+r}, v{d}")
            for i in range(0 if tailv else 8):
                e(f"v_sub_f32 {self.Se(pb, 8*qt+i)}, {self.Se(pb, 8*qt+i)}, v{d}")
            e(f"v_mul_f32 v{self.vL+qt}, v{self.vL+qt}, v{al}")
            for r in range(32):
                if qt < 2:
                    o = f"v{self.vO0 + 32*qt + r}"
                    e(f"v_mul_f32 {o}, {o}, v{al}")
                else:
                    o = f"a{self.aO1 + 32*(qt-2) + r}"
                    e(f"v_accvgpr_read_b32 v{X+2}, {o}")
                    e(f"v_mul_f32 v{X+2}, v{X+2}, v{al}")
                    e(f"v_accvgpr_write_b32 {o}, v{X+2}")
            self.softmax_plain(nb, qt, nb, d)
            e("s_nop 1")
            e(self.summ(nb, qt))
        e("s_nop 7")
        e(f"s_branch L_back{q}")

    def epilogue(self):
        e = self.e
        T, X = self.vT, self.vX
        self.lab("L_epi")
        pb = 1
        self.rstamp(63)
        self.stamp(50)
        LN = X + 23
        e("s_waitcnt vmcnt(0) lgkmcnt(0)")
        e("s_barrier")
        self.stamp(51)
        OA = self.vS + 16
        misc = [
            f"v_add_f32 v{self.vL+qt}, v{self.vL+qt}, v{self.vTS+4*qt}" for qt in range(4)
        ]
        bias = [f"v_add_f32 {self.Se(0, i)}, {self.Se(0, i)}, v{X+i}" for i in range(16)]
        WA, PA, SA, SP = self.vS + 28, self.vS + 29, self.vS + 30, self.vS + 31
        v32 = []
        for dt in range(8):
            for e_ in range(2):
                bq = self.aK + 4 * dt + 2 * e_
                v32.append(f"ds_read_b64_tr_b16 a[{bq}:{bq+1}], v{self.vVrd+dt} offset:{4096*e_}")
        smx = []
        for i in range(16 + 2):
            if i < 16:
                smx.append(f"v_exp_f32 v{T + (i % 8)}, {self.Se(0, i)}")
            k = i - 2
            if k >= 0 and k & 1:
                smx.append(f"v_cvt_pk_bf16_f32 {self.Pe(0, k >> 1)}, v{T + ((k-1) % 8)}, v{T + (k % 8)}")
        addr = [
            f"s_lshl_b32 s6, s{self.sW}, 14",
            f"v_lshlrev_b32 v{LN}, 4, v0",
            f"v_add_u32 v{WA}, s6, v{LN}",
        ]
        addr_late = [
            f"v_xor_b32 v{PA}, 0x8000, v{WA}",
            f"s_lshl_b32 s6, s{self.sW}, 10",
            f"s_add_u32 s6, s6, {self.LDS_T}",
            f"v_add_u32 v{SA}, s6, v{LN}",
            f"v_xor_b32 v{SP}, 0x800, v{SA}",
            f"v_mov_b32 v{X+16}, v{self.vNM+8}",
            f"v_mov_b32 v{X+17}, v{self.vNM+12}",
            f"v_mov_b32 v{X+18}, v{self.vL+2}",
            f"v_mov_b32 v{X+19}, v{self.vL+3}",
            f"ds_write_b128 v{SA}, v[{X+16}:{X+19}]",
        ]
        wr = [f"ds_write_b128 v{WA}, a[{self.aO1+4*i}:{self.aO1+4*i+3}] offset:{1024*i}" for i in range(16)]
        stream = bias[:8] + smx[:2] + bias[8:] + misc + addr + smx[2:]
        order = [(qt, dt) for qt in (2, 3, 0, 1) for dt in range(8)]
        si = 0
        nw = 0
        for n, (qt, dt) in enumerate(order):
            e(self.pv(pb, qt, dt))
            if n < 16:
                e(v32[n])
            cost = 0
            if n >= 16 and n % 2 == 0:
                e(wr[nw])
                nw += 1
                cost = 4
            while si < len(stream) and cost < self.tail_cap:
                e(stream[si])
                cost += 8 if "v_exp" in stream[si] else 4
                si += 1
        for y in stream[si:]:
            e(y)
        e("s_nop 1")
        e(self.summ(0, 0))
        e(self.summ(0, 1))
        for y in addr_late:
            e(y)
        e(f"v_max_f32 v{T}, v{self.vTS}, v{self.vTS+4}")
        e(f"v_cmp_lt_f32 vcc, s{self.sThr}, v{T}")
        e("s_waitcnt lgkmcnt(4)")
        e("s_cbranch_vccnz L_rareT")
        self.lab("L_backT")
        addr2 = [
            f"v_add_f32 v{self.vL}, v{self.vL}, v{self.vTS}",
            f"v_add_f32 v{self.vL+1}, v{self.vL+1}, v{self.vTS+4}",
            f"s_lshl_b32 s6, s{self.sW}, 13",
            f"s_add_u32 s6, s6, {self.LDS_V}",
            f"v_and_b32 v{T}, 15, v0",
            f"v_lshrrev_b32 v{T+1}, 5, v0",
            f"v_xor_b32 v{T+1}, v{T+1}, v{T}",
            f"v_lshlrev_b32 v{T+2}, 8, v{T}",
            f"v_lshl_or_b32 v{T+1}, v{T+1}, 4, v{T+2}",
            f"v_bfe_u32 v{T+2}, v0, 4, 1",
            f"v_lshl_or_b32 v{T+1}, v{T+2}, 3, v{T+1}",
            f"v_add_u32 v{OA}, s6, v{T+1}",
        ] + [f"v_xor_b32 v{OA+dt}, {dt << 5}, v{OA}" for dt in range(1, 8)] \
          + [f"v_add_u32 v{OA+8+j}, s6, v{self.vKdma+j}" for j in range(4)] \
          + [f"s_add_u32 s7, s{self.sH0}, 4096"]
        for n in range(16):
            qt, dt = n // 8, n % 8
            o = self.O(qt, dt)
            e(f"{MF} {o}, {self.r4('a', self.aK + 4*dt)}, {self.P(0, qt)}, {o}")
            if nw < 16 and n < 8:
                e(wr[nw])
                nw += 1
            for y in addr2[2 * n: 2 * n + 2]:
                e(y)
        assert nw == 16
        e("s_waitcnt lgkmcnt(0)")
        self.stamp(52)
        e("s_barrier")
        self.stamp(53)
        e(f"ds_read_b128 v[{X+4}:{X+7}], v{SP}")
        R = self.vS + 32
        e(f"v_mov_b32 v{X+8}, v{self.vNM}")
        e(f"v_mov_b32 v{X+9}, v{self.vNM+4}")
        for i in range(14):
            e(f"ds_read_b128 v[{R+4*i}:{R+4*i+3}], v{PA} offset:{1024*i}")
        e("s_waitcnt lgkmcnt(14)")
        for i in range(14, 16):
            e(f"ds_read_b128 v[{R+4*i}:{R+4*i+3}], v{PA} offset:{1024*i}")
        CA, CB = X + 12, X + 16
        for qt in range(2):
            e(f"v_min_f32 v{T+qt}, v{X+8+qt}, v{X+4+qt}")
            e(f"v_sub_f32 v{CA+2*qt}, v{T+qt}, v{X+8+qt}")
            e(f"v_sub_f32 v{CB+2*qt}, v{T+qt}, v{X+4+qt}")
        for qt in range(2):
            e(f"v_exp_f32 v{CA+2*qt}, v{CA+2*qt}")
            e(f"v_exp_f32 v{CB+2*qt}, v{CB+2*qt}")
        for qt in range(2):
            e(f"v_mul_f32 v{T+qt}, v{self.vL+qt}, v{CA+2*qt}")
        for qt in range(2):
            e(f"v_fma_f32 v{T+qt}, v{X+6+qt}, v{CB+2*qt}, v{T+qt}")
        for qt in range(2):
            e(f"v_rcp_f32 v{T+qt}, v{T+qt}")
        e("s_nop 0")
        for qt in range(2):
            e(f"v_mul_f32 v{CA+2*qt}, v{CA+2*qt}, v{T+qt}")
            e(f"v_mul_f32 v{CB+2*qt}, v{CB+2*qt}, v{T+qt}")
        PK = self.vP
        R2 = self.vP
        lds_seq = ["r%d" % i for i in range(16)]

        def wait_lds(tag):
            idx = lds_seq.index(tag)
            n = len(lds_seq) - 1 - idx
            e(f"s_waitcnt lgkmcnt({min(n, 15)})")
            del lds_seq[: idx + 1]

        for qt in range(2):
            for dt in range(8):
                i4 = 8 * qt + dt
                b_ = self.vO0 + 4 * i4
                for h in range(2):
                    e(f"v_pk_mul_f32 v[{b_+2*h}:{b_+2*h+1}], v[{b_+2*h}:{b_+2*h+1}], v[{CA+2*qt}:{CA+2*qt+1}] op_sel_hi:[1,0]")
                if f"r{i4}" in lds_seq:
                    wait_lds(f"r{i4}")
                for h in range(2):
                    e(f"v_pk_fma_f32 v[{b_+2*h}:{b_+2*h+1}], v[{R+4*i4+2*h}:{R+4*i4+2*h+1}], v[{CB+2*qt}:{CB+2*qt+1}], "
                      f"v[{b_+2*h}:{b_+2*h+1}] op_sel_hi:[1,0,1]")
                e(f"v_cvt_pk_bf16_f32 v{PK+2*i4}, v{b_}, v{b_+1}")
                e(f"v_cvt_pk_bf16_f32 v{PK+2*i4+1}, v{b_+2}, v{b_+3}")
                e(f"ds_write_b64 v{OA+dt}, v[{PK+2*i4}:{PK+2*i4+1}] offset:{4096*qt}")
                lds_seq.append(f"w{i4}")
                if qt == 1 and dt == 1:
                    for j in range(4):
                        rb = self.vO0 + 4 * j
                        e(f"ds_read_b128 v[{rb}:{rb+3}], v{OA+8+j} offset:{1024*j}")
                        lds_seq.append(f"b{j}")
                if qt == 1 and dt >= 4:
                    j = dt - 4
                    wait_lds(f"b{j}")
                    rb = self.vO0 + 4 * j
                    e(f"buffer_store_dwordx4 v[{rb}:{rb+3}], v{LN}, {self.srd(self.sO)}, s{self.sH0} offen offset:{1024*j}{self.stpol}")
        self.stamp(54)
        for j in range(4, 8):
            rb = self.vO0 + 4 * j
            e(f"ds_read_b128 v[{rb}:{rb+3}], v{OA+8+(j&3)} offset:{1024*j}")
        for j in range(4, 8):
            e(f"s_waitcnt lgkmcnt({7-j})")
            rb = self.vO0 + 4 * j
            e(f"buffer_store_dwordx4 v[{rb}:{rb+3}], v{LN}, {self.srd(self.sO)}, s7 offen offset:{1024*(j&3)}{self.stpol}")
        if self.diag:
            self.stamp(55)
            e("s_waitcnt vmcnt(0) lgkmcnt(0)")
            e("s_memtime s[80:81]")
            e("s_memrealtime s[86:87]")
            e("s_waitcnt lgkmcnt(0)")
            e("v_writelane_b32 v254, s80, 1")
            e("v_writelane_b32 v255, s86, 1")
            e("s_lshl_b32 s6, s2, 2")
            e(f"s_add_u32 s6, s6, s{self.sW}")
            e("s_lshl_b32 s6, s6, 9")
            e("s_add_u32 s84, s84, s6")
            e("s_addc_u32 s85, s85, 0")
            e("s_and_b32 s85, s85, 0xffff")
            e("s_mov_b32 s86, 512")
            e("s_mov_b32 s87, 0x00020000")
            e("v_lshlrev_b32 v1, 3, v0")
            e("buffer_store_dwordx2 v[254:255], v1, s[84:87], 0 offen")
        self.lab("L_end")
        e("s_endpgm")

    def build(self):
        k = NAME + "_kernel"
        self.prologue()
        pro = list(self.out)
        self.out.append(".p2align 6")
        for _ in range(self.align_pad):
            self.e("s_nop 0")
        its = []
        for q in range(4):
            n0 = len(self.out)
            self.iteration(q)
            its.append(self.out[n0:])
        n0 = len(self.out)
        self.epilogue()
        epi = self.out[n0:]
        self.stubs()
        rares = []
        for q in (0, 1, 2, 3, "T"):
            n0 = len(self.out)
            self.rare(q)
            rares.append(self.out[n0:])
        errs = []

        def upto_exit(lines):
            idx = [i for i, l in enumerate(lines) if "L_epi" in l][0]
            return lines[: idx + 1]

        def from3b(lines):
            idx = [i for i, l in enumerate(lines) if l.startswith("L_it3b")][0]
            return lines[idx:]

        errs += check(pro + its[0] + its[1] + its[2] + its[3] + its[0], "main")
        ib = [i for i, l in enumerate(epi) if l.startswith("L_backT")][0]
        errs += check(epi[:ib] + rares[4] + epi[ib:], "rareT")
        errs += check(its[1] + upto_exit(its[2]) + epi, "exit")
        for q in range(4):
            errs += check(its[q] + rares[q] + its[(q + 1) & 3], f"rare{q}")
        errs += check(its[2] + rares[2] + epi, "rare-exit")
        for x in errs:
            print("HAZARD", x, file=sys.stderr)
        text = HEADER + f"; @launch grid=(256,1,1) block=(256,1,1) lds={self.LDS_BYTES}\n"
        text += '.amdgcn_target "amdgcn-amd-amdhsa--gfx950"\n.text\n'
        text += DOC
        text += f".globl {k}\n.p2align 8\n.type {k},@function\n{k}:\n"
        text += "\n".join(self.out) + "\n"
        text += f""".section .rodata,"a"
.p2align 6
.amdhsa_kernel {k}
  .amdhsa_next_free_vgpr 512
  .amdhsa_next_free_sgpr 96
  .amdhsa_accum_offset 256
  .amdhsa_group_segment_fixed_size 0
  .amdhsa_kernarg_size 72
  .amdhsa_user_sgpr_count 2
  .amdhsa_user_sgpr_kernarg_segment_ptr 1
  .amdhsa_system_sgpr_workgroup_id_x 1
.end_amdhsa_kernel
"""
        return text, errs


if __name__ == "__main__":
    import argparse
    ap = argparse.ArgumentParser()
    ap.add_argument("-o", default=f"cdna_kernels/{NAME}.s")
    ap.add_argument("--nont", action="store_true")
    ap.add_argument("--diag", type=int, default=0)
    ap.add_argument("--pad", type=int, default=0)
    ap.add_argument("--dma", default=None)
    ap.add_argument("--kg", default=None)
    ap.add_argument("--vg", default=None)
    ap.add_argument("--budget", type=float, default=8)
    ap.add_argument("--c_ds", type=float, default=4)
    ap.add_argument("--c_dma", type=float, default=8)
    ap.add_argument("--c_salu", type=float, default=4)
    ap.add_argument("--fb", type=int, default=4)
    ap.add_argument("--c_exp", type=float, default=8)
    ap.add_argument("--lag", type=int, default=2)
    ap.add_argument("--exp_end", type=int, default=54)
    ap.add_argument("--stpol", default="nt")
    ap.add_argument("--pre_ticks", type=int, default=4)
    ap.add_argument("--qk_order", type=int, default=0)
    ap.add_argument("--lead", type=int, default=2)
    ap.add_argument("--qnt", action="store_true")
    ap.add_argument("--q_tick", type=int, default=2)
    ap.add_argument("--m_tick", type=int, default=4)
    ap.add_argument("--thr", type=int, default=14)
    for f in ("nodma", "nods", "novalu", "nomfma"):
        ap.add_argument("--" + f, action="store_true")
    a = ap.parse_args()
    L = lambda s: [int(x) for x in s.split(",")] if s else None
    g = Gen(nt=not a.nont, diag=a.diag, dma_gaps=L(a.dma), kread_gaps=L(a.kg), vread_gaps=L(a.vg), budget=a.budget,
            c_ds=a.c_ds, c_dma=a.c_dma, c_salu=a.c_salu, first_burst=a.fb, align_pad=a.pad, thr_log2=a.thr,
            nodma=a.nodma, nods=a.nods, novalu=a.novalu, nomfma=a.nomfma, c_exp=a.c_exp, lag=a.lag, exp_end=a.exp_end, pre_ticks=a.pre_ticks, qk_order=a.qk_order, lead=a.lead, qpol=' nt' if a.qnt else '', q_tick=a.q_tick, m_tick=a.m_tick, stpol=(' ' + a.stpol.replace('+', ' ')) if a.stpol else '')
    text, errs = g.build()
    open(a.o, "w").write(text)
    print("wrote", a.o, len(text), "bytes;", len(errs), "hazard reports")
```
